```python
import torch

def _softmax(x, axis=-1):
    return torch.softmax(x, dim=axis)
def _gelu(x):
    return torch.nn.functional.gelu(x, approximate="tanh")
def _silu(x):
    return torch.nn.functional.silu(x)
def _sigmoid(x):
    return torch.sigmoid(x)
def _layernorm(x, axis=-1, eps=1e-5):
    m = x.mean(dim=axis, keepdim=True)
    v = x.var(dim=axis, keepdim=True, unbiased=False)
    return (x - m) / torch.sqrt(v + eps)
def _scatter_add(tgt, idx, src, axis=0):
    return tgt.clone().index_add_(axis, idx, src)
def _segment_sum(src, seg, n):
    out = torch.zeros((n,) + src.shape[1:], dtype=src.dtype)
    return out.index_add_(0, seg, src)
def _pad(x, pw):
    flat = tuple(v for pair in reversed(pw) for v in pair)
    return torch.nn.functional.pad(x, flat)

kernel_name = 'concat_heads__mha_block_cached__gqa_block_cached__near_ridge'

def setup_inputs():

    _w = (lambda a: (lambda t: t.to(torch.bfloat16) if t.is_floating_point() else t)(torch.as_tensor(a)))
    def _A_setup():
        B, Sq, D = 8, 288, 576
        H, Sk, Dh = 32, 1024, 128
        return {
            "x": _w((lambda *s: torch.randn(*s, dtype=torch.bfloat16) * 0.8)(B, Sq, D)),
            "k_cache": _w((lambda *s: torch.randn(*s, dtype=torch.bfloat16) * 0.8)(B, H, Sk, Dh)),
            "v_cache": _w((lambda *s: torch.randn(*s, dtype=torch.bfloat16) * 0.05)(B, H, Sk, Dh)),
            "wq": _w((lambda *s: torch.randn(*s, dtype=torch.bfloat16) * 0.8)(D, H * Dh) * (D ** -0.5)),
            "wo": _w((lambda *s: torch.randn(*s, dtype=torch.bfloat16) * 0.05)(H * Dh, D) * ((H * Dh) ** -0.5)),
        }
    _A_in = _A_setup()

    def _B_setup():
        B, Sq, D = 8, 288, 576
        Hq, Hkv, Sk, Dh = 32, 32, 1024, 128
        assert Hq % Hkv == 0, (Hq, Hkv)
        return {
            "x": _w((lambda *s: torch.randn(*s, dtype=torch.bfloat16) * 0.8)(B, Sq, D)),
            "k_cache": _w((lambda *s: torch.randn(*s, dtype=torch.bfloat16) * 0.8)(B, Hkv, Sk, Dh)),
            "v_cache": _w((lambda *s: torch.randn(*s, dtype=torch.bfloat16) * 0.05)(B, Hkv, Sk, Dh)),
            "wq": _w((lambda *s: torch.randn(*s, dtype=torch.bfloat16) * 0.8)(D, Hq * Dh) * (D ** -0.5)),
            "wo": _w((lambda *s: torch.randn(*s, dtype=torch.bfloat16) * 0.05)(Hq * Dh, D) * ((Hq * Dh) ** -0.5)),
        }
    _B_in = _B_setup()

    return {
        "A_x": _A_in["x"],
        "A_k_cache": _A_in["k_cache"],
        "A_v_cache": _A_in["v_cache"],
        "A_wq": _A_in["wq"],
        "A_wo": _A_in["wo"],
        "B_x": _B_in["x"],
        "B_k_cache": _B_in["k_cache"],
        "B_v_cache": _B_in["v_cache"],
        "B_wq": _B_in["wq"],
        "B_wo": _B_in["wo"],
    }

def reference(A_x, A_k_cache, A_v_cache, A_wq, A_wo, B_x, B_k_cache, B_v_cache, B_wq, B_wo):
    def _A_ref(x, k_cache, v_cache, wq, wo):
        B, Sq, D = x.shape
        H, Dh = 32, 128
        q = (lambda x, *d: x.permute(*d))((x @ wq).reshape(B, Sq, H, Dh), 0, 2, 1, 3)
        scores = torch.einsum("bhqd,bhkd->bhqk", q, k_cache) * (Dh ** -0.5)
        p = _softmax(scores, axis=-1)
        o = torch.einsum("bhqk,bhkd->bhqd", p, v_cache)
        return (lambda x, *d: x.permute(*d))(o, 0, 2, 1, 3).reshape(B, Sq, H * Dh) @ wo

    def _B_ref(x, k_cache, v_cache, wq, wo):
        B, Sq, D = x.shape
        Hq, Dh = 32, 128
        Hkv = k_cache.shape[1]
        rep = Hq // Hkv
        q = (lambda x, *d: x.permute(*d))((x @ wq).reshape(B, Sq, Hq, Dh), 0, 2, 1, 3)
        k = (lambda x, n, axis: torch.repeat_interleave(x, n, dim=axis))(k_cache, rep, axis=1)
        v = (lambda x, n, axis: torch.repeat_interleave(x, n, dim=axis))(v_cache, rep, axis=1)
        scores = torch.einsum("bhqd,bhkd->bhqk", q, k) * (Dh ** -0.5)
        p = _softmax(scores, axis=-1)
        o = torch.einsum("bhqk,bhkd->bhqd", p, v)
        return (lambda x, *d: x.permute(*d))(o, 0, 2, 1, 3).reshape(B, Sq, Hq * Dh) @ wo

    a = _A_ref(A_x, A_k_cache, A_v_cache, A_wq, A_wo)
    b = _B_ref(B_x, B_k_cache, B_v_cache, B_wq, B_wo)
    return torch.concatenate([a, b], axis=-1)
```

```python
import re

REG_RE = re.compile(r'^(-?)(v|a|s)(?:(\d+)|\[(\d+):(\d+)\])$')

def regs_of(tok):
    tok = tok.strip()
    if tok in ('vcc',): return ['vcc']
    if tok == 'exec': return ['exec']
    if tok == 'm0': return ['m0']
    m = REG_RE.match(tok)
    if not m: return []
    k = m.group(2)
    if m.group(3) is not None: return [k + m.group(3)]
    return [k + str(i) for i in range(int(m.group(4)), int(m.group(5)) + 1)]

TRANS = ('v_exp_f32', 'v_rcp_f32', 'v_log_f32', 'v_rsq_f32', 'v_sqrt_f32')

class I:
    __slots__ = ('text', 'op', 'cls', 'rd', 'wr', 'srcc', 'tag', 'nop', 'data', 'seq')
    def __init__(self, text, tag=None):
        self.text = text; self.tag = tag; self.srcc = []; self.nop = 1; self.data = []; self.seq = None
        t = text.split(';')[0].strip()
        if not t or t.endswith(':') or t.startswith('.'):
            self.op = ''; self.cls = 'x'; self.rd = []; self.wr = []; self.nop = 0; return
        sp = t.split(None, 1); op = sp[0]; self.op = op
        ops = [o.strip() for o in sp[1].split(',')] if len(sp) > 1 else []
        mods = ''
        if ops:
            l = ops[-1].split(None, 1); ops[-1] = l[0]; mods = l[1] if len(l) > 1 else ''
        R = [regs_of(o) for o in ops]
        flat = lambda x: [r for l in x for r in l]
        if op.startswith('v_mfma'):
            self.cls = 'm'; self.wr = R[0]; self.rd = flat(R[1:]); self.srcc = R[3]
        elif op.startswith('v_smfmac'):
            self.cls = 'm'; self.wr = R[0]; self.rd = flat(R); self.srcc = R[0]
        elif op.startswith('ds_read'):
            self.cls = 'ds'; self.wr = R[0]; self.rd = flat(R[1:])
        elif op.startswith('ds_write'):
            self.cls = 'ds'; self.wr = []; self.rd = flat(R)
        elif op.startswith('buffer_load'):
            self.cls = 'vm'
            if ' lds' in ' ' + mods or mods.endswith('lds'):
                self.wr = []; self.rd = flat(R) + ['m0']
            else:
                self.wr = R[0]; self.rd = flat(R[1:])
        elif op.startswith('buffer_store'):
            self.cls = 'vm'; self.wr = []; self.rd = flat(R); self.data = R[0]
        elif op.startswith('buffer_atomic'):
            self.cls = 'vm'; self.rd = flat(R); self.wr = R[0] if 'sc0' in mods else []
        elif op.startswith('buffer_'):
            self.cls = 'vm'; self.rd = []; self.wr = []
        elif op.startswith('v_'):
            self.cls = 'v'
            if op.startswith('v_cmp'):
                self.wr = R[0]; self.rd = flat(R[1:])
            elif op.startswith('v_permlane') or op.startswith('v_swap'):
                self.wr = flat(R); self.rd = flat(R)
            elif op.startswith('v_fmac') or op.startswith('v_writelane'):
                self.wr = R[0]; self.rd = flat(R)
            else:
                self.wr = R[0] if R else []; self.rd = flat(R[1:])
        elif op.startswith('s_load') or op.startswith('s_memtime') or op.startswith('s_memrealtime'):
            self.cls = 'sm'; self.wr = R[0]; self.rd = flat(R[1:])
        elif op.startswith('s_'):
            self.cls = 's'
            if op == 's_nop':
                self.nop = int(ops[0], 0) + 1; self.rd = []; self.wr = []
            elif op.startswith(('s_cmp', 's_bitcmp')):
                self.rd = flat(R); self.wr = ['scc']
            elif op.startswith(('s_waitcnt', 's_barrier', 's_branch', 's_cbranch', 's_endpgm', 's_setprio', 's_sleep')):
                self.rd = []; self.wr = []
            else:
                self.wr = R[0] if R else []; self.rd = flat(R[1:])
        else:
            raise ValueError('unknown instr ' + text)
    def __repr__(self): return self.text

def mk(x): return x if isinstance(x, I) else I(x)

class Gaps:
    def __init__(self):
        self.m = []; self.sh = []; self.d = []; self.v = []; self.pre = []
    def add(self, ins):
        self.m.append(mk(ins)); self.sh.append([]); self.d.append([]); self.v.append([]); return len(self.m) - 1
    def cost(self, g):
        c = 4 * max(0, len(self.sh[g]) - 1) + 4 * len(self.d[g])
        for x in self.v[g]: c += 8 if x.op in TRANS else 4
        return c
    def place(self, ins, lo, hi=None, force=False):
        ins = mk(ins); n = len(self.m)
        lo = max(0, min(lo, n - 1)); hi = n - 1 if hi is None else max(lo, min(hi, n - 1))
        def need(g):
            if ins.cls == 's': return 0 if not self.sh[g] else 4
            return 8 if ins.op in TRANS else 4
        best = None
        if force: best = lo
        else:
            if ins.cls == 's':
                for g in range(lo, hi + 1):
                    if not self.sh[g]: best = g; break
            if best is None:
                for g in range(lo, hi + 1):
                    if self.cost(g) + need(g) <= 8: best = g; break
            if best is None:
                best = min(range(lo, hi + 1), key=lambda g: (self.cost(g) + need(g), g))
        (self.sh if ins.cls == 's' else self.d if ins.cls in ('ds', 'vm') else self.v)[best].append(ins)
        return best
    def emit(self):
        out = list(self.pre)
        for g in range(len(self.m)):
            out.append(self.m[g]); out += self.sh[g] + self.d[g] + self.v[g]
        return out
    def cycles(self):
        return sum(8 + max(8, self.cost(g)) for g in range(len(self.m)))

def parse_wait(t):
    vm = re.search(r'vmcnt\((\d+)\)', t); lg = re.search(r'lgkmcnt\((\d+)\)', t)
    return (int(vm.group(1)) if vm else None, int(lg.group(1)) if lg else None)

def auto_waits(ins, hoist=True):
    out = []; ds = []; vm = []
    def put(kind, q, idx):
        pos = len(out); n = len(q) - 1 - idx
        if hoist:
            p = len(out); cnt = n; ok = False
            while p > 0 and len(out) - p < 4:
                x = out[p - 1]
                if x.cls == 'm': ok = True; break
                if x.cls == 'x' or x.op.startswith(('s_barrier', 's_cbranch', 's_branch')): break
                if x is q[idx]: break
                if (kind == 'lgkmcnt' and x.cls == 'ds') or (kind == 'vmcnt' and x.cls == 'vm'):
                    cnt -= 1
                p -= 1
            if ok and cnt >= 0: pos = p; n = cnt
        lim = 15 if kind == 'lgkmcnt' else 63
        n = min(n, lim)
        if pos < len(out) and out[pos].op == 's_waitcnt':
            v, l = parse_wait(out[pos].text)
            if kind == 'vmcnt': v = n if v is None else min(v, n)
            else: l = n if l is None else min(l, n)
            out[pos] = I('s_waitcnt ' + ' '.join(([f'vmcnt({v})'] if v is not None else []) + ([f'lgkmcnt({l})'] if l is not None else [])))
        else:
            out.insert(pos, I(f's_waitcnt {kind}({n})'))
        del q[:idx + 1]
    for x in ins:
        if x.tag and isinstance(x.tag, tuple) and x.tag[0] == 'vmwait':
            idx = max([i for i, y in enumerate(vm) if y.tag in x.tag[1:]], default=-1)
            if idx >= 0: put('vmcnt', vm, idx)
            continue
        if x.op == 's_waitcnt':
            v, l = parse_wait(x.text)
            if v is not None and len(vm) > v: del vm[:len(vm) - v]
            if l is not None and len(ds) > l: del ds[:len(ds) - l]
            out.append(x); continue
        touched = set(x.rd) | set(x.wr)
        if touched:
            idx = max([i for i, y in enumerate(ds) if touched & set(y.wr)], default=-1)
            if idx >= 0 and not (x.cls == 'ds' and not (set(x.rd) & set(ds[idx].wr))): put('lgkmcnt', ds, idx)
            idx = max([i for i, y in enumerate(vm) if touched & set(y.wr)], default=-1)
            if idx >= 0 and not (x.cls == 'vm' and not (set(x.rd) & set(vm[idx].wr))): put('vmcnt', vm, idx)
        out.append(x)
        if x.cls == 'ds': ds.append(x)
        if x.cls == 'vm': vm.append(x)
        assert len(vm) <= 63, 'vmcnt overflow at ' + x.text
    return out

def need_states(p, c):
    n = 0
    pw = set(p.wr);
    if p.cls == 'm':
        big = 12 if p.op.startswith('v_smfmac') else 8
        if c.cls == 'm':
            ab = set(c.rd) - set(c.srcc) if not c.op.startswith('v_smfmac') else set(c.rd) - set(c.wr)
            if pw & ab: n = max(n, big)
            if pw & set(c.srcc) and (list(p.wr) != list(c.srcc) or p.op != c.op): n = max(n, big - 2)
            if pw & set(c.wr) and not (pw & set(c.srcc)): n = max(n, big - 2)
        elif c.cls in ('v', 'ds', 'vm'):
            if pw & (set(c.rd) | set(c.wr)): n = max(n, big)
            if c.cls == 'v' and set(p.srcc) & set(c.wr): n = max(n, 7 if big == 12 else 3)
    elif p.cls == 'v':
        vw = {r for r in pw if r[0] in 'va' and r != 'vcc'}; sw = pw - vw
        if c.cls == 'm' and vw & set(c.rd): n = max(n, 2)
        if p.op in TRANS and c.cls in ('v',) and c.op not in TRANS and vw & set(c.rd): n = max(n, 1)
        if c.op.startswith('v_permlane') and vw & set(c.rd): n = max(n, 2)
        if 'dpp' in c.text and vw & set(c.rd): n = max(n, 2)
        if c.op.startswith(('v_readfirstlane', 'v_readlane')) and vw & set(c.rd): n = max(n, 1)
        if sw & set(c.rd):
            if c.cls == 'vm': n = max(n, 5)
            if c.cls == 'v': n = max(n, 4 if c.op.startswith(('v_readlane', 'v_writelane')) else 2)
            if c.cls == 's': n = max(n, 1)
    elif p.cls == 's':
        if 'm0' in pw and c.cls == 'vm' and 'm0' in c.rd: n = max(n, 1)
        if 'exec' in pw and c.cls == 'm': n = max(n, 1)
    elif p.cls == 'vm':
        if len(p.data) >= 3 and set(p.data) & set(c.wr): n = max(n, 2)
    return n

def fix_hazards(ins, report=None):
    out = []
    for c in ins:
        if c.cls != 'x':
            dist = 0; short = 0
            for p in reversed(out):
                if dist >= 12: break
                if p.cls != 'x':
                    short = max(short, need_states(p, c) - dist)
                dist += p.nop
            if short > 0:
                if report is not None: report.append((short, c.text))
                out.append(I(f's_nop {short - 1}'))
        out.append(c)
    return out

def text(ins): return '\n'.join(x.text for x in ins) + '\n'

NOSCC = ('s_mov', 's_cselect', 's_mul_i32', 's_mul_hi', 's_waitcnt', 's_barrier', 's_nop', 's_branch', 's_cbranch', 's_setprio', 's_sleep', 's_endpgm', 's_movk', 's_getreg', 's_getpc')
def check_order(ins):
    last = -1; scc = None
    for x in ins:
        if x.seq is not None:
            assert x.seq > last, 'sequence order broken at ' + x.text
            last = x.seq
        if x.cls == 's':
            if x.op.startswith(('s_cselect', 's_cbranch_scc')): assert scc is not None and scc.op.startswith(('s_cmp', 's_bitcmp')), ('scc', x.text, scc)
            if x.op.startswith('s_addc'): assert scc.op == 's_add_u32', ('scc', x.text, scc)
            if not x.op.startswith(NOSCC): scc = x
def merge_waits(ins):
    out = []
    for x in ins:
        if x.op == 's_waitcnt' and out and out[-1].op == 's_waitcnt':
            a, b = parse_wait(out[-1].text), parse_wait(x.text)
            mn = lambda p, q: q if p is None else p if q is None else min(p, q)
            v, l = mn(a[0], b[0]), mn(a[1], b[1])
            out[-1] = I('s_waitcnt ' + ' '.join(([f'vmcnt({v})'] if v is not None else []) + ([f'lgkmcnt({l})'] if l is not None else [])))
        else: out.append(x)
    return out
def finish(ins, rep=None):
    out = fix_hazards(merge_waits(auto_waits(ins)), rep)
    check_order(out)
    return out
def est_cycles(ins):
    t = 0; mf = -100; prev = None
    for x in ins:
        if x.cls == 'x': continue
        if x.cls == 'm':
            t = max(t, mf + 16); mf = t; t += 4
        elif x.cls in ('s', 'sm'):
            t += 4 * x.nop
        else:
            t = max(t, mf + 8)
            if x.cls in ('ds', 'vm') and prev is not None and prev.cls == 'v': t += 8
            t += 8 if x.op in TRANS else 4
        prev = x
    return t
```

```python
from asmlib import *

PIECE = 1056; SLOT = 16 * PIECE; BLK = 8 * PIECE; KT = 4 * PIECE
KR = 0; VR = 4 * SLOT; XR = VR; XW = 20 * PIECE; EX = 8 * SLOT
EXL = EX + 16384
EXF = EXL + 1024
LDS_ATTN = 153600
MF = 'v_mfma_f32_16x16x32_bf16'
SCALE = 0x3e0293ee
import struct, math
assert struct.unpack('<I', struct.pack('<f', math.log2(math.e) / math.sqrt(128)))[0] == SCALE, hex(struct.unpack('<I', struct.pack('<f', math.log2(math.e) / math.sqrt(128)))[0])

def vr(b, n=4): return f'v[{b}:{b+n-1}]'
def ar(b, n=4): return f'a[{b}:{b+n-1}]'

sX, sWq, sK, sV, sO = 28, 32, 36, 40, 44
def srd(b): return f's[{b}:{b+3}]'
sW = 48; sP = 49; sT = 50; sXB = 51; sXXB = 52; sWB = 53; sXM = 54; sWM = 55
sKo = 56; sVo = 57; sKm = 58; sVm = 59; sKd = 60; sVd = 61; sLoop = 62; sHead = 63
sOe = 64; sOo = 65; sOX = 66; sKm0 = 67; sVm0 = 68; sKmE = 69; sVmE = 70; sScale = 71
sBad = 72
sLo = 74; sHi = 75; sMode = 76; sT2 = 77
vKA = (240, 241); vKB = (242, 243); vVA = (244, 245); vVB = (246, 247)
vDK = 248; vL16 = 249; vW = (250, 251); vXr = 252; vDW = 253; vDX = 254; vTmp = 255
vEXw = 250; vEXr = 251; vLw = 252; vLr = 253
def O(i, t): return 32 * i + 4 * t
def P(par, i): return 128 + 36 * par + 8 * i
def S(n): return 200 + 4 * (n % 6)
vOnes = 224; vIdx = 228; vLX = 229; vRL = 230
vM = 235
vT = 200
def Q(i, s, hh=0): return 80 * hh + 16 * i + 4 * s
def OX(t): return 160 + 4 * t
def Lr(i): return 192 + 4 * i
def KF(buf, s): return 208 + 16 * buf + 4 * s
def VF(buf, blk): return 240 + 8 * buf + 4 * blk

def setup():
    L = []
    A = lambda t: L.append(I(t))
    A('s_cmp_ge_u32 s2, 256'); A('s_cbranch_scc1 L_attn_end')
    A('s_load_dwordx16 s[4:19], s[0:1], 0'); A('s_load_dwordx4 s[20:23], s[0:1], 64'); A('s_load_dwordx2 s[24:25], s[0:1], 96')
    A('v_lshrrev_b32 v1, 6, v0'); A('v_and_b32 v0, 63, v0')
    A(f'v_readfirstlane_b32 s{sW}, v1')
    A('v_lshrrev_b32 v1, 4, v0'); A('v_bfe_u32 v2, v0, 2, 2'); A('v_and_b32 v3, 3, v0')
    A(f'v_lshlrev_b32 v{vL16}, 4, v0')
    A(f's_and_b32 s{sP}, s{sW}, 1')
    A('s_and_b32 s26, s2, 7'); A('s_lshr_b32 s3, s2, 3')
    A('s_and_b32 s27, s26, 1'); A('s_lshl_b32 s27, s27, 2'); A(f's_lshr_b32 s{sT}, s3, 3'); A(f's_add_u32 s27, s27, s{sT}')
    A('s_and_b32 s3, s3, 7'); A(f's_and_b32 s{sT}, s26, 2'); A(f's_lshl_b32 s{sT}, s{sT}, 2'); A(f's_add_u32 s3, s3, s{sT}')
    A('s_lshr_b32 s26, s26, 2')
    A('v_lshlrev_b32 v4, 6, v1'); A('v_lshl_add_u32 v4, v3, 4, v4')
    A(f'v_lshl_add_u32 v{vDK}, v2, 8, v4'); A(f'v_lshl_add_u32 v{vDW}, v2, 13, v4')
    A('v_and_b32 v5, 1, v1'); A('v_lshl_add_u32 v5, v5, 3, v2'); A('v_mul_u32_u24 v5, 1152, v5')
    A('v_lshrrev_b32 v6, 1, v1'); A('v_lshl_add_u32 v5, v6, 6, v5'); A(f'v_lshl_add_u32 v{vDX}, v3, 4, v5')
    A(f's_mul_i32 s{sXB}, s{sW}, {64*1152}')
    A(f's_lshr_b32 s{sT}, s{sW}, 1'); A(f's_mul_i32 s{sXXB}, s{sT}, {16*1152}'); A(f's_add_u32 s{sXXB}, s{sXXB}, {256*1152}')
    A(f's_add_u32 s{sOX}, s{sT}, 16'); A(f's_lshl_b32 s{sOX}, s{sOX}, 17')
    A(f's_lshl_b32 s{sWB}, s{sW}, 17')
    A(f's_mul_i32 s{sXM}, s{sW}, {XW}'); A(f's_add_u32 s{sXM}, s{sXM}, {XR}')
    A(f's_mul_i32 s{sWM}, s{sW}, {KT}')
    A('s_waitcnt lgkmcnt(0)')
    A('s_cmp_eq_u32 s26, 0')
    A('s_cselect_b64 s[4:5], s[4:5], s[14:15]'); A('s_cselect_b64 s[6:7], s[6:7], s[16:17]')
    A('s_cselect_b64 s[8:9], s[8:9], s[18:19]'); A('s_cselect_b64 s[10:11], s[10:11], s[20:21]')
    def mksrd(d, ptr, off, num):
        A(f's_add_u32 s{d}, s{ptr}, s{off}'); A(f's_addc_u32 s{d+1}, s{ptr+1}, 0'); A(f's_and_b32 s{d+1}, s{d+1}, 0xffff')
        if isinstance(num, int): A(f's_mov_b32 s{d+2}, {num}')
        else: A(f's_sub_u32 s{d+2}, {num[0]}, s{off}')
        A(f's_mov_b32 s{d+3}, 0x20000')
    A(f's_mul_i32 s{sT}, s27, 331776'); mksrd(sX, 4, sT, 331776)
    A(f's_lshl_b32 s{sT}, s3, 9'); mksrd(sWq, 10, sT, (576 * 8192,))
    return L, mksrd_late()

def mksrd_late():
    L = []
    A = lambda t: L.append(I(t))
    def mksrd(d, ptr, off, num):
        A(f's_add_u32 s{d}, s{ptr}, s{off}'); A(f's_addc_u32 s{d+1}, s{ptr+1}, 0'); A(f's_and_b32 s{d+1}, s{d+1}, 0xffff')
        if isinstance(num, int): A(f's_mov_b32 s{d+2}, {num}')
        else: A(f's_sub_u32 s{d+2}, {num[0]}, s{off}')
        A(f's_mov_b32 s{d+3}, 0x20000')
    A(f's_lshl_b32 s{sT}, s27, 4'); A(f's_add_u32 s{sT}, s{sT}, s3'); A(f's_lshl_b32 s{sT}, s{sT}, 19')
    mksrd(sK, 6, sT, 524288); mksrd(sV, 8, sT, 524288)
    A(f's_mul_i32 s{sT}, s26, {144*131072}'); A(f's_mul_i32 s{sT2}, s27, {18*131072}'); A(f's_add_u32 s{sT}, s{sT}, s{sT2}')
    A(f's_lshl_b32 s{sT2}, s3, 13'); A(f's_add_u32 s{sT}, s{sT}, s{sT2}')
    mksrd(sO, 24, sT, (288 * 131072,))
    A(f's_lshl_b32 s20, s{sP}, 8'); A('s_sub_u32 s21, 256, s20')
    A(f's_mul_i32 s22, s{sP}, {BLK}'); A(f's_sub_u32 s23, {BLK}, s22')
    A(f'v_mul_u32_u24 v4, {PIECE}, v2'); A('v_lshl_add_u32 v4, v3, 6, v4'); A('v_lshl_add_u32 v4, v1, 4, v4')
    A(f'v_mul_u32_u24 v5, {PIECE}, v1'); A('v_lshl_add_u32 v5, v2, 6, v5'); A('v_lshl_add_u32 v5, v3, 3, v5'); A(f'v_add_u32 v5, {VR}, v5')
    for (regs, base) in ((vKA + vKB, 4), (vVA + vVB, 5)):
        for k, reg in enumerate(regs):
            A(f's_add_u32 s{sT}, s{20 + (k & 1)}, s{22 + (k >> 1)}'); A(f'v_add_u32 v{reg}, s{sT}, v{base}')
    A(f'v_mul_u32_u24 v6, {2*PIECE}, v1'); A('v_and_b32 v7, 1, v1'); A('v_lshl_add_u32 v6, v7, 3, v6')
    A('v_lshl_add_u32 v6, v2, 6, v6'); A('v_lshl_add_u32 v6, v3, 4, v6')
    A(f'v_add_u32 v{vW[0]}, s20, v6'); A(f'v_add_u32 v{vW[1]}, s21, v6')
    A('v_and_b32 v7, 1, v2'); A(f'v_mul_u32_u24 v7, {PIECE}, v7'); A('v_lshrrev_b32 v8, 1, v2'); A('v_lshl_add_u32 v7, v8, 8, v7')
    A('v_lshl_add_u32 v7, v3, 6, v7'); A('v_lshl_add_u32 v7, v1, 4, v7'); A(f'v_add_u32 v{vXr}, s{sXM}, v7')
    A(f's_mov_b32 s{sKm0}, s{sWM}'); A(f's_add_u32 s{sVm0}, s{sWM}, {VR}')
    A(f's_add_u32 s{sKmE}, s{sKm0}, {4*SLOT}'); A(f's_add_u32 s{sVmE}, s{sVm0}, {4*SLOT}')
    A(f's_lshl_b32 s{sKo}, s{sW}, 12'); A(f's_mov_b32 s{sVo}, s{sKo}')
    A(f's_mov_b32 s{sKm}, s{sKm0}'); A(f's_mov_b32 s{sVm}, s{sVm0}')
    A(f's_mov_b32 s{sKd}, {2*SLOT}'); A(f's_mov_b32 s{sVd}, {2*SLOT}')
    A(f's_lshl_b32 s{sT}, s{sW}, 19'); A(f's_lshl_b32 s{sT2}, s{sP}, 10')
    A(f's_add_u32 s{sOe}, s{sT}, s{sT2}'); A(f's_add_u32 s{sOX}, s{sOX}, s{sT2}')
    A(f's_sub_u32 s{sT2}, 1024, s{sT2}'); A(f's_add_u32 s{sOo}, s{sT}, s{sT2}')
    A(f's_mov_b32 s{sScale}, {SCALE:#x}'); A(f's_mov_b32 s{sHead}, 0'); A(f's_mov_b32 s{sMode}, 0')
    A(f's_mov_b32 s{sLo}, 0x21800000'); A(f's_mov_b32 s{sHi}, 0x5d800000')
    return L

def dma_x(j):
    ops = []
    for pcs in range(10):
        tile, pc = pcs >> 1, pcs & 1
        imm = (pcs & 3) * PIECE
        s = []
        if pcs & 3 == 0: s.append(f's_add_u32 m0, s{sXM}, {(j & 1) * 10 * PIECE + pcs * PIECE}')
        base, row = (sXB, 16 * tile + 4 * pc) if tile < 4 else (sXXB, 4 * pc)
        s.append(f's_add_u32 s{sT}, s{base}, {row * 1152 + j * 128 - imm}')
        ops.append((s, I(f'buffer_load_dwordx4 v{vDX}, {srd(sX)}, s{sT} offen offset:{imm} lds', tag=f'x{j}')))
    return ops
def dma_w(hs):
    ops = []; j, hh = hs >> 1, hs & 1
    for jj in range(4):
        imm = jj * PIECE + 8 * (jj >> 1)
        s = []
        if jj == 0: s.append(f's_add_u32 m0, s{sWM}, {((hs + 2) & 3) * SLOT}')
        s.append(f's_add_u32 s{sT}, s{sWB}, {(64 * j + 4 * jj) * 8192 + hh * 256 - imm}')
        ops.append((s, I(f'buffer_load_dwordx4 v{vDW}, {srd(sWq)}, s{sT} offen offset:{imm} lds', tag=f'w{hs}')))
    return ops
def dma_kv(which, tag):
    so, sm, s0, sE, d = (sKo, sKm, sKm0, sKmE, sK) if which == 'K' else (sVo, sVm, sVm0, sVmE, sV)
    ops = []
    for jj in range(4):
        s = [f's_add_u32 m0, s{sm}, {32 * jj}'] if jj else [f's_mov_b32 m0, s{sm}']
        ops.append((s, I(f'buffer_load_dwordx4 v{vDK}, {srd(d)}, s{so} offen offset:{1024 * jj} nt lds', tag=tag)))
    post = [f's_add_u32 s{so}, s{so}, 16384', f's_add_u32 s{sm}, s{sm}, {SLOT}', f's_cmp_eq_u32 s{sm}, s{sE}', f's_cselect_b32 s{sm}, s{s0}, s{sm}']
    return ops, post

def flat_ops(ops, post=()):
    L = []
    for s, d in ops: L += [I(x) for x in s] + [d]
    return L + [I(x) for x in post]

SEQ = [0]
def seqd(x):
    x = mk(x); SEQ[0] += 1; x.seq = SEQ[0]; return x
def place_ops(G, ops, lo, step, post=()):
    g = lo
    for s, d in ops:
        for x in s: g = G.place(seqd(x), g) + 1
        g = G.place(seqd(d), g - 1 if 'm0' not in s[-1] else g, min(g + 3, len(G.m) - 1))
        G.lastdma = g
        g += step
    g -= step - 1
    for x in post: g = G.place(seqd(x), g) + 1
    return g

def acc(i, hh, s, u):
    if i < 4:
        n = ((i * 2 + hh) * 4 + s) * 2 + u
    else:
        n = 64 + (hh * 2 + (s >> 1)) * 2 + u
    if n >= 64: return ('v', (52 + n - 64) * 4)
    if n < 52: return ('v', n * 4)
    return ('a', 160 + (n - 52) * 4)
def reg(k, n=4): return f'{k[0]}[{k[1]}:{k[1]+n-1}]'
def XF(buf, i, ks): return 40 * buf + 8 * i + 4 * ks
def WF(buf, ks): return 80 + 8 * buf + 4 * ks

def w_reads(tau):
    hs, k = tau >> 3, tau & 7; s, u = k >> 1, k & 1
    L = []
    for ks in range(2):
        for h in range(2):
            off = ((hs + 2) & 3) * SLOT + ks * BLK + h * PIECE + (s >> 1) * 512 + u * 8
            L.append(f'ds_read_b64_tr_b16 {ar(WF(tau % 3, ks) + 2 * h, 2)}, v{vW[s & 1]} offset:{off}')
    return L
def x_reads(j):
    return [f'ds_read_b128 {ar(XF(j & 1, i, ks))}, v{vXr} offset:{(j & 1) * 10 * PIECE + i * 2 * PIECE + ks * 512}' for i in range(5) for ks in range(2)]
def k_reads(m, kt):
    regs = vKA if kt < 2 else vKB
    return [f'ds_read_b128 {ar(KF(kt & 1, s))}, v{regs[s & 1]} offset:{(m & 1) * SLOT + (kt & 1) * KT + (s >> 1) * 512}' for s in range(4)]
def v_reads(m, t):
    T, tt = t >> 1, t & 1
    return [f'ds_read_b64_tr_b16 {ar(VF(t & 1, blk) + 2 * u, 2)}, v{(vVA, vVB)[blk][T & 1]} offset:{(m & 1) * SLOT + u * KT + (T >> 1) * 512 + tt * 32}'
            for blk in range(2) for u in range(2)]
def vmwait(*tags): return I('', tag=('vmwait',) + tags)

def qproj(late):
    L = []
    L += flat_ops(dma_x(0)) + flat_ops(dma_w(0)) + flat_ops(dma_w(1)) + flat_ops(dma_x(1)) + flat_ops(dma_w(2)) + flat_ops(dma_w(3))
    L += late
    L += [vmwait('x0', 'w0'), I('s_barrier')]
    L += [I(x) for x in x_reads(0) + w_reads(0) + w_reads(1)]
    L += [I('s_waitcnt lgkmcnt(8)')] + flat_ops(dma_x(2))
    G = Gaps(); start = {}
    for tau in range(144):
        hs, k = tau >> 3, tau & 7; j, hh = hs >> 1, hs & 1; s, u = k >> 1, k & 1
        start[tau] = len(G.m)
        for i in range(5 if s % 2 == 0 else 4):
            d = reg(acc(i, hh, s, u))
            for ks in range(2):
                c = '0' if (j == 0 and ks == 0) else d
                G.add(f'{MF} {d}, {ar(WF(tau % 3, ks))}, {ar(XF(j & 1, i, ks))}, {c}')
    start[144] = len(G.m)
    for hs in range(18):
        j, hh = hs >> 1, hs & 1
        bar = start[hs * 8 + 6] - 1
        G.sh[bar] += [vmwait(f'w{hs+1}' if hs < 17 else 'K0'), I('s_waitcnt lgkmcnt(0)'), I('s_barrier')]
        for k in range(8):
            tau = hs * 8 + k
            if tau + 2 < 144:
                g = start[tau] - (1 if tau else 0)
                if g == bar: g += 1
                for x in w_reads(tau + 2): g = G.place(x, g)
        if hh == 0 and j < 8:
            g = start[hs * 8]
            G.sh[g].append(vmwait(f'x{j+1}'))
            for x in x_reads(j + 1): g = G.place(x, g + 3)
            assert g < bar
        g = bar + 3
        if hs + 4 < 18: g = place_ops(G, dma_w(hs + 4), g, 2)
        elif hs < 17:
            if hs == 16:
                ops, post = dma_kv('V', 'V0'); g = place_ops(G, ops, g, 2, post)
            ops, post = dma_kv('K', f'K{hs - 14}'); g = place_ops(G, ops, g, 2, post)
        else:
            pass
        if hh == 0 and j + 3 < 9: g = place_ops(G, dma_x(j + 3), g + 1, 2)
    g = start[17 * 8 + 6] + 1
    for x in k_reads(0, 0): g = G.place(x, g)
    L += G.emit()
    return L, G.cycles()

def qconv():
    L = []; A = lambda t: L.append(I(t))
    A(f's_lshl_b32 s{sT}, s{sW}, 12'); A(f's_add_u32 s{sT}, s{sT}, {EX}'); A(f'v_add_u32 v{vEXw}, s{sT}, v{vL16}')
    A(f's_xor_b32 s{sT2}, s{sW}, 1'); A(f's_lshl_b32 s{sT2}, s{sT2}, 12'); A(f's_add_u32 s{sT2}, s{sT2}, {EX}'); A(f'v_add_u32 v{vEXr}, s{sT2}, v{vL16}')
    A(f'v_mov_b32 v{vDW}, s{sScale}'); A(f'v_mov_b32 v{vDX}, s{sScale}')
    A(f'v_mov_b32 v{vTmp}, s{sScale}')
    SC = 'v[254:255]'
    def conv(i, hh, s, tmp=None):
        k0, k1 = acc(i, hh, s, 0), acc(i, hh, s, 1)
        assert k0[0] == k1[0] and k1[1] == k0[1] + 4
        if k0[0] == 'a':
            for r in range(8): A(f'v_accvgpr_read_b32 v{tmp + r}, a{k0[1] + r}')
            b = tmp
        else: b = k0[1]
        for r in range(0, 8, 2): A(f'v_pk_mul_f32 {vr(b + r, 2)}, {vr(b + r, 2)}, {SC}')
        for r in range(4): A(f'v_cvt_pk_bf16_f32 v{b + r}, v{b + 2*r}, v{b + 2*r + 1}')
        for r in range(4): A(f'v_accvgpr_write_b32 a{Q(i, s, hh) + r}, v{b + r}')
        return b
    for hh in range(2):
        for s in (0, 2):
            b = conv(4, hh, s)
            A(f'ds_write_b128 v{vEXw}, {vr(b)} offset:{(hh * 2 + (s >> 1)) * 1024}')
    order = [(i, hh, s) for hh in range(2) for i in range(4) for s in range(4)]
    order.sort(key=lambda x: acc(x[0], x[1], x[2], 0)[0] == 'a')
    for n, (i, hh, s) in enumerate(order):
        conv(i, hh, s, tmp=(n & 1) * 8)
        if n == 3:
            A('s_waitcnt lgkmcnt(0)'); A('s_barrier')
            for h2 in range(2):
                for s2 in (0, 2): A(f'ds_read_b128 {ar(Q(4, s2 + 1, h2))}, v{vEXr} offset:{(h2 * 2 + (s2 >> 1)) * 1024}')
    A(f'v_lshrrev_b32 v0, 4, v{vL16}')
    A('v_and_b32 v1, 1, v0'); A('v_cmp_eq_u32 vcc, 1, v1'); A('v_mov_b32 v2, 0x44444444'); A('v_mov_b32 v3, 0xeeeeeeee')
    A(f'v_cndmask_b32 v{vIdx}, v2, v3, vcc')
    A('v_and_b32 v1, 2, v0'); A('v_cmp_eq_u32 vcc, 0, v1'); A('v_mov_b32 v2, 0x3f803f80'); A('v_and_b32 v4, 15, v0')
    A(f'v_cndmask_b32 v{vOnes}, 0, v2, vcc')
    for r in range(1, 4): A(f'v_mov_b32 v{vOnes + r}, v{vOnes}')
    A(f'v_lshlrev_b32 v4, 5, v4'); A(f'v_add_u32 v{vLr}, {EXL}, v4')
    A(f's_lshr_b32 s{sT}, s{sW}, 1'); A(f's_lshl_b32 s{sT}, s{sT}, 9'); A(f's_lshl_b32 s{sT2}, s{sP}, 4'); A(f's_add_u32 s{sT}, s{sT}, s{sT2}')
    A('v_lshrrev_b32 v5, 4, v0'); A(f'v_lshl_add_u32 v5, v5, 2, v{vLr}'); A(f'v_add_u32 v{vLw}, s{sT}, v5')
    for i in range(4):
        for r in range(4): A(f'v_accvgpr_write_b32 a{Lr(i) + r}, 0')
    A(f'v_mov_b32 v{vLX}, 0')
    A('s_waitcnt lgkmcnt(0)')
    return L

CH = [(kt, i) for kt in range(4) for i in range(5 if kt < 2 else 4)]
def softmax_ops(n, par, sub):
    kt, i = CH[n]; b = S(n)
    pre = [f'v_add_f32 v{b + r}, v{vM + i}, v{b + r}' for r in range(4)] if sub else []
    ex = [f'v_exp_f32 v{b + r}, v{b + r}' for r in range(4)]
    pd = P(par, i) + 2 * kt
    cv = [f'v_cvt_pk_bf16_f32 v{pd + h}, v{b + 2*h}, v{b + 2*h + 1}' for h in range(2)]
    ad = [f'v_add_f32 v{vLX}, v{vLX}, v{b + r}' for r in range(4)] if i == 4 else []
    return pre, ex, cv, ad

def qk_chain(G, n):
    kt, i = CH[n]; d = vr(S(n))
    for s in range(4): g = G.add(f'{MF} {d}, {ar(KF(kt & 1, s))}, {ar(Q(i, s))}, {d if s else 0}')
    return g
def pv_items(par, first, sm_at):
    items = []
    for t in range(8):
        order = [0, 1, 2, 4, 3] if t == 0 else [0, 1, 2, 3, 4]
        for i in order:
            if i < 4:
                d = vr(O(i, t))
                items.append((t, [f'{MF} {d}, {ar(VF(t & 1, 0))}, {vr(P(par, i))}, {0 if first else d}',
                                  f'{MF} {d}, {ar(VF(t & 1, 1))}, {vr(P(par, i) + 4)}, {d}']))
            else:
                d = ar(OX(t))
                items.append((t, [f'{MF} {d}, {ar(VF(t & 1, 0))}, {vr(P(par, 4))}, {0 if first else d}']))
        for i in sm_at.get(t, []):
            items.append((-1 - i, [f'v_smfmac_f32_16x16x64_bf16 {ar(Lr(i))}, {vr(vOnes)}, {vr(P(par, i), 8)}, v{vIdx}']))
    return items

def place_softmax(G, n, par, g0, step, sub, force=False):
    pre, ex, cv, ad = softmax_ops(n, par, sub)
    ge = []
    g = g0
    for r in range(4):
        if sub: G.place(pre[r], g, force=True); g = G.place(ex[r], g, force=True)
        else: g = G.place(ex[r], g, force=force)
        ge.append(g); g += step
    return ge, cv, ad

def toggles(regs, sd):
    return [f'v_add_u32 v{r}, s{sd}, v{r}' for r in regs]

def stage(kind, s, sub=False):
    G = Gaps(); par = s & 1; npar = par ^ 1
    cend = {}; cbeg = {}; tend = {}; smg = {}
    tail = []
    if kind == 'P':
        for n in range(18): cbeg[n] = len(G.m); cend[n] = qk_chain(G, n)
    else:
        items = pv_items(par, s == 0, {1: [0], 3: [1], 5: [2], 6: [3]} if kind == 'S' else {0: [0, 1, 2, 3]})
        tot = sum(len(x[1]) for x in items); done = 0; k = 0
        for n in range(18):
            if kind == 'S': cbeg[n] = len(G.m); cend[n] = qk_chain(G, n)
            while k < len(items) and (done + len(items[k][1]) / 2.0 <= (n + 1) * tot / 18.0 + 1e-9 or n == 17):
                for x in items[k][1]: g = G.add(x)
                if items[k][0] >= 0: tend[items[k][0]] = g
                else: smg[-1 - items[k][0]] = g
                done += len(items[k][1]); k += 1
    later = []
    if kind != 'P':
        later.append(place_softmax(G, 17, par, 0, 2 if kind == 'S' else 1, sub))
    if kind == 'S':
        for n in range(17): later.append(place_softmax(G, n, npar, cbeg[n + 1], 2, sub))
    if kind == 'P':
        for n in range(16): later.append(place_softmax(G, n, npar, cbeg[n + 2], 1, sub, force=True))
        pre, ex, cv, ad = softmax_ops(16, npar, sub); tail = [I(x) for x in pre + ex + cv]
    F = kind == 'P'
    if kind != 'D':
        bar = cend[14]
        G.sh[bar] += [I('s_waitcnt vmcnt(12)'), I('s_barrier')]
        first_of = {1: -1, 2: 4, 3: 9}
        lastk = {}
        for kt in (1, 2, 3):
            g = cend[first_of[kt]] if first_of[kt] >= 0 else 0
            for x in k_reads(s + 1, kt): g = G.place(x, g, force=F) + (1 if F else 2)
            lastk[kt] = g
        if par == 0:
            g = lastk[1]
            for x in toggles(vKA, sKd): g = G.place(x, g)
            g = max(g, lastk[3])
            for x in toggles(vKB, sKd): g = G.place(x, g)
            G.place(f's_sub_u32 s{sKd}, 0, s{sKd}', g + 1)
        g = bar + 1
        for x in k_reads(s + 2, 0): g = G.place(x, g, force=F) + (1 if F else 2)
        gk0 = g
    if kind != 'P':
        lastv = {}
        for t in range(1, 8):
            g = tend[t - 2] if t >= 2 else 0
            for x in v_reads(s, t): g = G.place(x, g)
            lastv[t] = g
        if par == 1:
            g = lastv[5] + 1
            for x in toggles((vVA[0], vVB[0]), sVd): g = G.place(x, g)
            g = max(g, lastv[7] + 1)
            for x in toggles((vVA[1], vVB[1]), sVd): g = G.place(x, g)
            G.place(f's_sub_u32 s{sVd}, 0, s{sVd}', g + 1)
    if kind != 'D':
        g = max(tend[6], bar + 1) if kind == 'S' else gk0
        for x in v_reads(s + 1, 0): g = G.place(x, g, force=F) + (1 if F else 0)
    for ge, cv, ad in later:
        if F:
            G.place(cv[0], ge[2], force=True)
            if ge[3] + 1 < len(G.m): G.place(cv[1], ge[3] + 1, force=True)
            else: tail.insert(1, I(cv[1]))
        else:
            G.place(cv[0], ge[1] + 1, ge[1] + 5); G.place(cv[1], ge[3] + 1, ge[3] + (5 if kind == 'S' else 1))
        for r, x in enumerate(ad): G.place(x, ge[r] + 1, ge[r] + 7, force=F)
    if kind != 'D':
        step = 10 if kind == 'S' else 4
        ops, post = dma_kv('V', 'V'); g = place_ops(G, ops, 2, step, post)
        ops, post = dma_kv('K', 'K'); g = place_ops(G, ops, g + (6 if kind == 'S' else 1), step, post)
        assert G.lastdma < bar, (G.lastdma, bar)
    if kind == 'D':
        tail = epilogue(G, tend, smg, sub)
    return G.emit() + tail, G.cycles()

def epilogue(G, tend, smg, sub):
    n = len(G.m); pend = []
    for i in range(4):
        g = smg[i] + 7
        pend += [(g, f'v_accvgpr_read_b32 v{vT + 2*i}, a{Lr(i)}'), (g, f'v_accvgpr_read_b32 v{vT + 2*i + 1}, a{Lr(i) + 1}'),
                 (g, f'v_add_f32 v{vT + 2*i}, v{vT + 2*i}, v{vT + 2*i + 1}'),
                 (g, f'v_accvgpr_write_b32 a{Lr(i)}, 0'), (g, f'v_rcp_f32 v{vRL + i}, v{vT + 2*i}'), (g, f'v_accvgpr_write_b32 a{Lr(i) + 1}, 0')]
    g = smg[3] + 7
    pend += [(g, f'ds_write_b32 v{vLw}, v{vLX}')]
    pend += [(g, f'v_cmp_nge_f32 s[{sBad}:{sBad+1}], v{vT}, s{sLo}')]
    for i in range(4):
        if i: pend += [(g, f'v_cmp_nge_f32 vcc, v{vT + 2*i}, s{sLo}'), (g, f's_or_b64 s[{sBad}:{sBad+1}], s[{sBad}:{sBad+1}], vcc')]
        pend += [(g, f'v_cmp_nle_f32 vcc, v{vT + 2*i}, s{sHi}'), (g, f's_or_b64 s[{sBad}:{sBad+1}], s[{sBad}:{sBad+1}], vcc')]
    pend += [(g, f's_or_b32 s{sBad}, s{sBad}, s{sBad+1}'), (g, f'v_mov_b32 v{vT}, s{sBad}'), (g, f's_lshl_b32 s{sT}, s{sW}, 2'),
             (g, f'v_mov_b32 v{vT + 1}, s{sT}'), (g, f'v_add_u32 v{vT + 1}, {EXF}, v{vT + 1}'), (g, f'v_mov_b32 v{vLX}, 0'), (g, f'ds_write_b32 v{vT + 1}, v{vT}')]
    k = 0
    for T in range(4):
        g = tend[2 * T + 1] + 5
        if T & 1:
            for tt in range(2): pend.append((g, f'ds_write_b128 v{vEXw}, {ar(OX(2*T + tt))} offset:{((T >> 1) * 2 + tt) * 1024}'))
        if T == 3: pend.append((g, 'XBAR'))
        for i in range(4):
            b = O(i, 2 * T); tmp = P(0, 0) + 4 * (k % 8); k += 1
            for r in range(8): pend.append((g, f'v_mul_f32 v{b + r}, v{vRL + i}, v{b + r}'))
            pend.append((g, f's_add_u32 s{sT}, s{(sOe, sOo)[T & 1]}, {i * 131072}'))
            for r in range(4): pend.append((g, f'v_cvt_pk_bf16_f32 v{tmp + r}, v{b + 2*r}, v{b + 2*r + 1}'))
            pend.append((g, f'buffer_store_dwordx4 {vr(tmp)}, v{vL16}, {srd(sO)}, s{sT} offen offset:{(T >> 1) * 2048}'))
    tail = []; cur = 0; R = P(1, 0)
    for g, x in pend:
        if x == 'XBAR':
            tail += [I('s_waitcnt lgkmcnt(0)'), I('s_barrier')]
            for q in range(4): tail.append(I(f'ds_read_b128 {vr(R + 4*q)}, v{vEXr} offset:{q * 1024}'))
            for q in range(4): tail.append(I(f'ds_read_b128 {vr(R + 16 + 4*q)}, v{vLr} offset:{(q >> 1) * 512 + (q & 1) * 16}'))
            tail += [I(f'v_mov_b32 v{vT + 1}, {EXF}'), I(f'ds_read_b128 {vr(R + 32)}, v{vT + 1}')]
            cur = n; continue
        x = I(x); cur = max(cur, g)
        while cur < n:
            need = 0 if x.cls == 's' and not G.sh[cur] else 8 if x.op in TRANS else 4
            ok = G.cost(cur) + need <= 8
            mine = getattr(G, 'mine', {}).get(cur, -1)
            rank = 0 if x.cls == 's' else 1 if x.cls in ('ds', 'vm') else 2
            if ok and rank >= mine: break
            cur += 1
        if cur < n:
            G.place(x, cur, force=True); G.mine = getattr(G, 'mine', {}); G.mine[cur] = rank
        else: tail.append(x)
    A = lambda t: tail.append(I(t))
    for pr in range(2):
        b = R + 16 + 8 * pr
        for r in range(4): A(f'v_add_f32 v{b + r}, v{b + r}, v{b + 4 + r}')
        A(f'v_add_f32 v{b}, v{b}, v{b + 1}'); A(f'v_add_f32 v{b + 2}, v{b + 2}, v{b + 3}'); A(f'v_add_f32 v{b}, v{b}, v{b + 2}')
    A(f's_cmp_lt_u32 s{sW}, 2'); A('s_cselect_b64 vcc, -1, 0')
    A(f'v_cndmask_b32 v{vT}, v{R + 24}, v{R + 16}, vcc')
    A(f'v_rcp_f32 v{vRL + 4}, v{vT}')
    A(f'v_or3_b32 v{R + 32}, v{R + 32}, v{R + 33}, v{R + 34}'); A(f'v_or_b32 v{R + 32}, v{R + 32}, v{R + 35}')
    A(f'v_cmp_ne_u32 s[{sBad}:{sBad+1}], 0, v{R + 32}')
    for pr in range(2):
        A(f'v_cmp_nge_f32 vcc, v{R + 16 + 8*pr}, s{sLo}'); A(f's_or_b64 s[{sBad}:{sBad+1}], s[{sBad}:{sBad+1}], vcc')
        A(f'v_cmp_nle_f32 vcc, v{R + 16 + 8*pr}, s{sHi}'); A(f's_or_b64 s[{sBad}:{sBad+1}], s[{sBad}:{sBad+1}], vcc')
    for Th in range(2):
        b = R + 8 * Th; tmp = P(0, 0) + 4 * (k % 8); k += 1
        for r in range(8): A(f'v_accvgpr_read_b32 v{vT + r}, a{OX(4 * Th) + r}')
        for r in range(8): A(f'v_add_f32 v{b + r}, v{b + r}, v{vT + r}')
        for r in range(8): A(f'v_mul_f32 v{b + r}, v{vRL + 4}, v{b + r}')
        for r in range(4): A(f'v_cvt_pk_bf16_f32 v{tmp + r}, v{b + 2*r}, v{b + 2*r + 1}')
        A(f'buffer_store_dwordx4 {vr(tmp)}, v{vL16}, {srd(sO)}, s{sOX} offen offset:{Th * 2048}')
    return tail

def head_code(sub, lab):
    mark = lambda n: I(f'@{n}:')
    seq = []; cyc = {}
    parts = [('P', -1), ('S', 0), ('S', 1), ('S', 2), ('S', 1), ('S', 2), ('D', 15)]
    for n, (k, s) in enumerate(parts):
        code, c = stage(k, s, sub); cyc[(k, s)] = c
        if (k, s) == ('S', 2): code += [I(f's_sub_u32 s{sLoop}, s{sLoop}, 1'), I(f's_cmp_lg_u32 s{sLoop}, 0'), I(f's_cbranch_scc1 {lab}_loop')]
        if (k, s) == ('S', 0): code.insert(1, I(f's_mov_b32 s{sLoop}, 7'))
        seq += [mark(n)] + code
    rep = []
    seq = finish(seq, rep)
    cut = {}; cur = None
    for x in seq:
        if x.text.startswith('@'): cur = int(x.text[1:-1]); cut[cur] = []
        else: cut[cur].append(x)
    assert text(cut[2]) == text(cut[4]), 'S odd differs between entries'
    assert text(cut[3]) == text(cut[5]), 'S even differs between entries'
    out = cut[0] + cut[1] + [I(f'{lab}_loop:')] + cut[2] + cut[3] + cut[6]
    return out, cyc, rep

def build():
    s0, late = setup()
    q, qc = qproj(late)
    rep = []
    pre = finish(s0 + q + qconv(), rep)
    hc, cyc, rep2 = head_code(False, 'L_h')
    L = pre + [I('L_head:'), I('s_nop 1')] + hc
    A = lambda t: L.append(I(t))
    A(f's_cmp_eq_u32 s{sHead}, 1'); A('s_cbranch_scc1 L_attn_end')
    A(f's_mov_b32 s{sHead}, 1')
    for s in (sOe, sOo, sOX): A(f's_add_u32 s{s}, s{s}, 4096')
    for r in range(80): A(f'v_accvgpr_mov_b32 a{r}, a{80 + r}')
    A('s_branch L_head')
    A('L_attn_end:'); A('s_endpgm')
    info = dict(qproj_cycles=qc, stage_cycles=cyc, nops=rep + rep2)
    return L, info

if __name__ == '__main__':
    L, info = build()
    print(info)
    open('attn_body.s', 'w').write(text(L))
```

```python
from asmlib import *
MF = 'v_mfma_f32_16x16x32_bf16'
HALF = 26688; SLOT = 2 * HALF; WOFF = 14336; PARS = 6176
LDS_OPROJ = 3 * SLOT
def vr(b, n=4): return f'v[{b}:{b+n-1}]'
def ar(b, n=4): return f'a[{b}:{b+n-1}]'
sO, sWo, sOut = 28, 32, 36
def srd(b): return f's[{b}:{b+3}]'
sW = 48; sKh = 49; sNh = 50; sT = 51; sT2 = 52; sOo = 53; sQs = 54; sWoff = 55; sM = 56; sM0 = 57; sME = 58
sR = 59; sRd = 60; sLoop = 61; sQ = 64
sOn = 62; sWn = 63
vL16 = 100; vDW = 101; vOB = 102; vWA = 103; vSt = 104; vEw = 105; vEr = 106
def ACC(q, a): return 4 * (3 * q + a)
def BF(buf, q, ks): return 80 * buf + 8 * q + 4 * ks
def AF(buf, a, ks): return 80 * buf + 56 + 8 * a + 4 * ks

def dma():
    ops = []
    for q in range(7):
        s = []
        if q % 4 == 0: s.append(f's_add_u32 m0, s{sM}, {q * 1024}')
        s.append(f's_add_u32 s{sT}, s{sOo}, s{sQ + q}')
        ops.append((s, f'buffer_load_dwordx4 v{vL16}, {srd(sO)}, s{sT} offen offset:{(q % 4) * 1024} lds'))
    for k in range(6):
        ks, Tc = k // 3, k % 3
        s = []
        if Tc == 0: s.append(f's_add_u32 m0, s{sM}, s{sWoff}' if ks == 0 else 's_add_u32 m0, m0, 3072')
        s.append(f's_add_u32 s{sT}, s{sT2}, {ks * 32 * 1152 + Tc * 64 - Tc * 1024 + 2048}')
        ops.append((s, f'buffer_load_dwordx4 v{vDW}, {srd(sWo)}, s{sT} offen offset:{Tc * 1024} lds'))
    post = [f's_add_u32 s{sOo}, s{sOo}, 4096', f's_add_u32 s{sT2}, s{sT2}, {128 * 1152}',
            f's_add_u32 s{sM}, s{sM}, {SLOT}', f's_cmp_eq_u32 s{sM}, s{sME}', f's_cselect_b32 s{sM}, s{sM0}, s{sM}']
    return ops, post
def reads(buf):
    L = []
    for ks in range(2):
        for a in range(3):
            for u in range(2): L.append(f'ds_read_b64_tr_b16 {ar(AF(buf, a, ks) + 2*u, 2)}, v{vWA} offset:{ks * 3072 + a * 1024 + u * 512}')
    for q in range(7):
        for ks in range(2): L.append(f'ds_read_b128 {ar(BF(buf, q, ks))}, v{vOB} offset:{(ks * 7 + q) * 1024}')
    return L
def mfmas(buf):
    return [f'{MF} {vr(ACC(q, a))}, {ar(AF(buf, a, ks))}, {ar(BF(buf, q, ks))}, {vr(ACC(q, a))}' for q in range(7) for a in range(3) for ks in range(2)]

SEQ = [0]
def seqd(x):
    x = mk(x); SEQ[0] += 1; x.seq = SEQ[0]; return x
def stage(buf):
    G = Gaps()
    G.pre = [I('s_waitcnt vmcnt(13) lgkmcnt(0)'), I('s_barrier')]
    for x in mfmas(buf ^ 1): G.add(x)
    ops, post = dma(); g = 0
    for s, d in ops:
        for x in s: g = G.place(seqd(x), g) + 1
        g = G.place(seqd(d), g - 1) + 2
    for x in post: g = G.place(seqd(x), g - 1) + 2
    g = 0
    for x in reads(buf): g = G.place(x, g)
    tail = [f's_add_u32 s{sR}, s{sR}, 1', f's_cmp_eq_u32 s{sR}, 3', f's_cselect_b32 s{sRd}, s{sOn}, {SLOT}', f's_cselect_b32 s{sR}, 0, s{sR}']
    g = max(g, 36)
    for x in tail: g = G.place(seqd(x), g) + 1
    G.place(f'v_add_u32 v{vOB}, s{sRd}, v{vOB}', g); G.place(f'v_add_u32 v{vWA}, s{sRd}, v{vWA}', g)
    return G.emit()

def build():
    L = []; A = lambda t: L.append(I(t))
    A('s_and_b32 s26, s2, 3'); A('s_lshl_b32 s26, s26, 5'); A('s_lshr_b32 s3, s2, 3'); A('s_add_u32 s3, s3, s26')
    A('s_cmp_ge_u32 s2, 256'); A('s_cbranch_scc1 L_op_end')
    A('s_cmp_ge_u32 s3, 126'); A('s_cbranch_scc1 L_op_end')
    A('s_load_dwordx2 s[4:5], s[0:1], 32'); A('s_load_dwordx4 s[8:11], s[0:1], 72'); A('s_load_dwordx2 s[12:13], s[0:1], 96')
    A('v_lshrrev_b32 v1, 6, v0'); A('v_and_b32 v0, 63, v0'); A(f'v_readfirstlane_b32 s{sW}, v1')
    A('v_lshrrev_b32 v1, 4, v0'); A('v_bfe_u32 v2, v0, 2, 2'); A('v_and_b32 v3, 3, v0'); A(f'v_lshlrev_b32 v{vL16}, 4, v0')
    A('s_bfe_u32 s26, s2, 0x10002')
    A('s_mul_i32 s27, s3, 43691'); A('s_lshr_b32 s27, s27, 18')
    A('s_mul_i32 s14, s27, 6'); A('s_sub_u32 s14, s3, s14')
    A(f's_lshr_b32 s{sKh}, s{sW}, 1'); A(f's_and_b32 s{sNh}, s{sW}, 1')
    A('v_lshl_add_u32 v4, v1, 3, v2'); A('v_mul_u32_u24 v4, 1152, v4'); A(f'v_lshl_add_u32 v{vDW}, v3, 4, v4')
    A(f's_cmp_eq_u32 s{sKh}, 0'); A(f's_cselect_b32 s{sQs}, 1, -1'); A('s_cselect_b32 s15, 0, 6')
    A('s_mul_i32 s16, s27, 7'); A('s_add_u32 s15, s15, s16')
    for q in range(7):
        A(f's_mul_i32 s{sT}, s{sQs}, {q}'); A(f's_add_u32 s{sT}, s{sT}, s15'); A(f's_lshl_b32 s{sT}, s{sT}, 17')
        A(f's_add_u32 s{sQ + q}, s{sT}, {4096 - (q % 4) * 1024}')
    A(f's_lshl_b32 s{sOo}, s{sW}, 10')
    A(f's_mul_i32 s{sT2}, s{sKh}, {64 * 1152}'); A(f's_mul_i32 s{sT}, s{sNh}, {4 * 1152}'); A(f's_add_u32 s{sT2}, s{sT2}, s{sT}')
    A(f's_mul_i32 s{sT}, s14, 192'); A(f's_add_u32 s{sT2}, s{sT2}, s{sT}')
    A(f's_mul_i32 s{sM0}, s{sKh}, {HALF}'); A(f's_mul_i32 s{sT}, s{sNh}, 7168'); A(f's_add_u32 s{sM0}, s{sM0}, s{sT}')
    A(f's_mul_i32 s{sWoff}, s{sNh}, {(PARS - 7168) & 0xffffffff}'); A(f's_add_u32 s{sWoff}, s{sWoff}, {WOFF}')
    A(f's_mov_b32 s{sM}, s{sM0}'); A(f's_add_u32 s{sME}, s{sM0}, {3 * SLOT}')
    A('s_waitcnt lgkmcnt(0)')
    A('s_cmp_eq_u32 s26, 0'); A('s_cselect_b64 s[4:5], s[4:5], s[8:9]')
    A(f's_sub_u32 s{sWo}, s4, 2048'); A(f's_subb_u32 s{sWo+1}, s5, 0'); A(f's_and_b32 s{sWo+1}, s{sWo+1}, 0xffff')
    A(f's_mov_b32 s{sWo+2}, {4096 * 1152 + 2048}'); A(f's_mov_b32 s{sWo+3}, 0x20000')
    A(f's_mul_i32 s{sT}, s26, {144 * 131072}'); A(f's_add_u32 s{sO}, s12, s{sT}'); A(f's_addc_u32 s{sO+1}, s13, 0')
    A(f's_sub_u32 s{sO}, s{sO}, 4096'); A(f's_subb_u32 s{sO+1}, s{sO+1}, 0'); A(f's_and_b32 s{sO+1}, s{sO+1}, 0xffff')
    A(f's_mov_b32 s{sO+2}, {144 * 131072 + 4096}'); A(f's_mov_b32 s{sO+3}, 0x20000')
    for k in range(2):
        ops, post = dma()
        for s, d in ops: L.extend([I(x) for x in s] + [I(d)])
        L.extend(I(x) for x in post)
    A(f's_mov_b32 s{sOut}, s10'); A(f's_and_b32 s{sOut+1}, s11, 0xffff'); A(f's_mov_b32 s{sOut+2}, {2304 * 2304}'); A(f's_mov_b32 s{sOut+3}, 0x20000')
    A(f's_mul_i32 s{sT}, s{sKh}, {HALF}'); A(f'v_add_u32 v{vOB}, s{sT}, v{vL16}')
    A(f's_lshl_b32 s16, s{sNh}, 5'); A(f's_add_u32 s{sT}, s{sT}, s16'); A(f's_add_u32 s{sT}, s{sT}, {WOFF}')
    A('v_and_b32 v4, 1, v1'); A(f'v_mul_u32_u24 v4, {PARS}, v4'); A('v_lshrrev_b32 v5, 1, v1'); A('v_lshl_add_u32 v4, v5, 8, v4')
    A('v_lshl_add_u32 v4, v2, 6, v4'); A('v_lshl_add_u32 v4, v3, 3, v4'); A(f'v_add_u32 v{vWA}, s{sT}, v4')
    A('v_and_b32 v4, 15, v0'); A('v_mul_u32_u24 v4, 2304, v4'); A('v_lshl_add_u32 v4, v1, 3, v4')
    A(f's_mul_i32 s{sT}, s26, 1152'); A('s_mul_i32 s17, s14, 192'); A(f's_add_u32 s{sT}, s{sT}, s17'); A(f's_add_u32 s{sT}, s{sT}, s16')
    A(f'v_add_u32 v{vSt}, s{sT}, v4')
    A(f's_mul_i32 s{sT}, s{sW}, 12288'); A(f'v_add_u32 v{vEw}, s{sT}, v{vL16}')
    A(f's_xor_b32 s{sT}, s{sW}, 2'); A(f's_mul_i32 s{sT}, s{sT}, 12288'); A(f'v_add_u32 v{vEr}, s{sT}, v{vL16}')
    for r in range(84): A(f'v_mov_b32 v{r}, 0')
    for r in range(80, 160): A(f'v_accvgpr_write_b32 a{r}, 0')
    A(f's_mov_b32 s{sOn}, {-2 * SLOT & 0xffffffff}'); A(f's_mov_b32 s{sR}, 0'); A(f's_mov_b32 s{sLoop}, 16')
    A('L_op_loop:')
    A(f's_cmp_eq_u32 s{sLoop}, 1'); A(f's_cselect_b32 s{sO+2}, 0, s{sO+2}'); A(f's_cselect_b32 s{sWo+2}, 0, s{sWo+2}')
    L += stage(0) + stage(1)
    A(f's_sub_u32 s{sLoop}, s{sLoop}, 1'); A(f's_cmp_lg_u32 s{sLoop}, 0'); A('s_cbranch_scc1 L_op_loop')
    A('s_waitcnt vmcnt(0) lgkmcnt(0)'); A('s_barrier')
    m = mfmas(1)
    for x in m[18:] + m[:18]: A(x)
    for q in range(3, 7):
        for a in range(3): A(f'ds_write_b128 v{vEw}, {vr(ACC(q, a))} offset:{((6 - q) * 3 + a) * 1024}')
    A('s_waitcnt lgkmcnt(0)'); A('s_barrier')
    R = 128
    for k in range(12): A(f'ds_read_b128 {vr(R + 4 * k)}, v{vEr} offset:{k * 1024}')
    for q in range(4):
        A(f's_mul_i32 s{sT}, s{sQs}, {q}'); A(f's_add_u32 s{sT}, s{sT}, s15'); A(f's_mul_i32 s{sT}, s{sT}, {16 * 2304}')
        for a in range(3):
            b = ACC(q, a); k = 3 * q + a
            for r in range(4): A(f'v_add_f32 v{b + r}, v{b + r}, v{R + 4*k + r}')
            A(f'v_cvt_pk_bf16_f32 v{b}, v{b}, v{b + 1}'); A(f'v_cvt_pk_bf16_f32 v{b + 1}, v{b + 2}, v{b + 3}')
            A(f'buffer_store_dwordx2 {vr(b, 2)}, v{vSt}, {srd(sOut)}, s{sT} offen offset:{a * 64}')
    A('L_op_end:'); A('s_endpgm')
    rep = []
    return finish(L, rep), rep
```

```python
import sys, importlib
from asmlib import *
import attn, oproj
NAME = 'concat_heads__mha_block_cached__gqa_block_cached__near_ridge'
def kd(name, vg=512, acc=256):
    return f'''.amdhsa_kernel {name}
  .amdhsa_next_free_vgpr {vg}
  .amdhsa_next_free_sgpr 96
  .amdhsa_accum_offset {acc}
  .amdhsa_group_segment_fixed_size 0
  .amdhsa_kernarg_size 104
  .amdhsa_user_sgpr_count 2
  .amdhsa_user_sgpr_kernarg_segment_ptr 1
  .amdhsa_system_sgpr_workgroup_id_x 1
.end_amdhsa_kernel
'''
def head(name): return f'.globl {name}\n.p2align 8\n.type {name},@function\n{name}:\n'
def build(path):
    a, info = attn.build(); o, rep = oproj.build()
    print(info, rep)
    s = '; generated by gen/build.py\n'
    s += f'; @launch kernel=attn_kernel grid=(256,1,1) block=(256,1,1) lds={attn.LDS_ATTN}\n'
    s += f'; @launch kernel=oproj_kernel grid=(256,1,1) block=(256,1,1) lds={oproj.LDS_OPROJ}\n'
    s += '.amdgcn_target "amdgcn-amd-amdhsa--gfx950"\n.text\n'
    s += head('attn_kernel') + text(a) + head('oproj_kernel') + text(o)
    s += '.section .rodata,"a"\n.p2align 6\n' + kd('attn_kernel') + '.p2align 6\n' + kd('oproj_kernel')
    open(path, 'w').write(s)
if __name__ == '__main__':
    build(sys.argv[1] if len(sys.argv) > 1 else f'cdna_kernels/{NAME}.s')
```

```python
import re

REG_RE = re.compile(r'^(-?)(v|a|s)(?:(\d+)|\[(\d+):(\d+)\])$')

def regs_of(tok):
    tok = tok.strip()
    if tok in ('vcc',): return ['vcc']
    if tok in ('exec', 'exec_hi', 'exec_lo'): return ['exec']
    if tok == 'm0': return ['m0']
    m = REG_RE.match(tok)
    if not m: return []
    k = m.group(2)
    if m.group(3) is not None: return [k + m.group(3)]
    return [k + str(i) for i in range(int(m.group(4)), int(m.group(5)) + 1)]

TRANS = ('v_exp_f32', 'v_rcp_f32', 'v_log_f32', 'v_rsq_f32', 'v_sqrt_f32')

class I:
    __slots__ = ('text', 'op', 'cls', 'rd', 'wr', 'srcc', 'tag', 'nop', 'data', 'seq')
    def __init__(self, text, tag=None):
        self.text = text; self.tag = tag; self.srcc = []; self.nop = 1; self.data = []; self.seq = None
        t = text.split(';')[0].strip()
        if not t or t.endswith(':') or t.startswith('.'):
            self.op = ''; self.cls = 'x'; self.rd = []; self.wr = []; self.nop = 0; return
        sp = t.split(None, 1); op = sp[0]; self.op = op
        ops = [o.strip() for o in sp[1].split(',')] if len(sp) > 1 else []
        mods = ''
        if ops:
            l = ops[-1].split(None, 1); ops[-1] = l[0]; mods = l[1] if len(l) > 1 else ''
        R = [regs_of(o) for o in ops]
        flat = lambda x: [r for l in x for r in l]
        if op.startswith('v_mfma'):
            self.cls = 'm'; self.wr = R[0]; self.rd = flat(R[1:]); self.srcc = R[3]
        elif op.startswith('v_smfmac'):
            self.cls = 'm'; self.wr = R[0]; self.rd = flat(R); self.srcc = R[0]
        elif op.startswith('ds_read'):
            self.cls = 'ds'; self.wr = R[0]; self.rd = flat(R[1:])
        elif op.startswith('ds_write'):
            self.cls = 'ds'; self.wr = []; self.rd = flat(R)
        elif op.startswith('buffer_load'):
            self.cls = 'vm'
            if ' lds' in ' ' + mods or mods.endswith('lds'):
                self.wr = []; self.rd = flat(R) + ['m0']
            else:
                self.wr = R[0]; self.rd = flat(R[1:])
        elif op.startswith('buffer_store'):
            self.cls = 'vm'; self.wr = []; self.rd = flat(R); self.data = R[0]
        elif op.startswith('buffer_atomic'):
            self.cls = 'vm'; self.rd = flat(R); self.wr = R[0] if 'sc0' in mods else []
        elif op.startswith('buffer_'):
            self.cls = 'vm'; self.rd = []; self.wr = []
        elif op.startswith('v_'):
            self.cls = 'v'
            if op.startswith('v_cmp'):
                self.wr = R[0]; self.rd = flat(R[1:])
            elif op.startswith('v_permlane') or op.startswith('v_swap'):
                self.wr = flat(R); self.rd = flat(R)
            elif op.startswith('v_fmac') or op.startswith('v_writelane'):
                self.wr = R[0]; self.rd = flat(R)
            else:
                self.wr = R[0] if R else []; self.rd = flat(R[1:])
        elif op.startswith('s_load') or op.startswith('s_memtime') or op.startswith('s_memrealtime'):
            self.cls = 'sm'; self.wr = R[0]; self.rd = flat(R[1:])
        elif op.startswith('s_'):
            self.cls = 's'
            if op == 's_nop':
                self.nop = int(ops[0], 0) + 1; self.rd = []; self.wr = []
            elif op.startswith(('s_cmp', 's_bitcmp')):
                self.rd = flat(R); self.wr = ['scc']
            elif op.startswith(('s_waitcnt', 's_barrier', 's_branch', 's_cbranch', 's_endpgm', 's_setprio', 's_sleep')):
                self.rd = []; self.wr = []
            else:
                self.wr = R[0] if R else []; self.rd = flat(R[1:])
        else:
            raise ValueError('unknown instr ' + text)
    def __repr__(self): return self.text

def mk(x): return x if isinstance(x, I) else I(x)

class Gaps:
    def __init__(self):
        self.m = []; self.sh = []; self.d = []; self.v = []; self.pre = []
    def add(self, ins):
        self.m.append(mk(ins)); self.sh.append([]); self.d.append([]); self.v.append([]); return len(self.m) - 1
    def vfull(self, g):
        return g >= 0 and sum(8 if x.op in TRANS else 4 for x in self.v[g]) >= 8
    def cost(self, g, extra=None):
        sh, d, v = list(self.sh[g]), list(self.d[g]), list(self.v[g])
        if extra is not None: (sh if extra.cls in ('s', 'x') else d if extra.cls in ('ds', 'vm') else v).append(extra)
        c = 4 * max(0, len(sh) - 1)
        if any(x.op == 's_barrier' for x in sh): c += 8
        for x in d: c += 20 if x.op.startswith(('buffer_store_dwordx4', 'ds_write_b128')) else 4
        if sum(x.cls == 'ds' for x in d) >= 2 and not self.vfull(g - 1): c += 4
        if sum(x.cls == 'vm' for x in d) >= 2: c += 4
        for x in v: c += 8 if x.op in TRANS else 4
        return c
    def place(self, ins, lo, hi=None, force=False):
        ins = mk(ins); n = len(self.m)
        lo = max(0, min(lo, n - 1)); hi = n - 1 if hi is None else max(lo, min(hi, n - 1))
        best = None
        if force: best = lo
        else:
            if ins.cls in ('s', 'x'):
                for g in range(lo, hi + 1):
                    if not self.sh[g]: best = g; break
            if best is None:
                for g in range(lo, hi + 1):
                    if self.cost(g, ins) <= 8: best = g; break
            if best is None:
                best = min(range(lo, hi + 1), key=lambda g: (max(8, self.cost(g, ins)) - max(8, self.cost(g)), g))
        (self.sh if ins.cls in ('s', 'x') else self.d if ins.cls in ('ds', 'vm') else self.v)[best].append(ins)
        return best
    def barrier(self, lo, waits):
        g = lo
        while self.sh[g] or self.d[g] or self.v[g]: g += 1
        self.sh[g].append(I('s_barrier')); self.sh[g - 1] += [mk(w) for w in waits]
        return g
    def emit(self):
        out = list(self.pre)
        for g in range(len(self.m)):
            out.append(self.m[g]); out += self.sh[g] + self.d[g] + self.v[g]
        return out
    def cycles(self):
        return sum(8 + max(8, self.cost(g)) for g in range(len(self.m)))

def parse_wait(t):
    vm = re.search(r'vmcnt\((\d+)\)', t); lg = re.search(r'lgkmcnt\((\d+)\)', t)
    return (int(vm.group(1)) if vm else None, int(lg.group(1)) if lg else None)

def auto_waits(ins, hoist=True):
    out = []; ds = []; vm = []
    def put(kind, q, idx):
        pos = len(out); n = len(q) - 1 - idx
        if hoist:
            p = len(out); cnt = n; ok = False
            while p > 0 and len(out) - p < 4:
                x = out[p - 1]
                if x.cls == 'm': ok = True; break
                if x.cls == 'x' or x.op.startswith(('s_barrier', 's_cbranch', 's_branch')): break
                if x is q[idx]: break
                if (kind == 'lgkmcnt' and x.cls == 'ds') or (kind == 'vmcnt' and x.cls == 'vm'):
                    cnt -= 1
                p -= 1
            if ok and cnt >= 0: pos = p; n = cnt
        lim = 15 if kind == 'lgkmcnt' else 63
        n = min(n, lim)
        if pos < len(out) and out[pos].op == 's_waitcnt':
            v, l = parse_wait(out[pos].text)
            if kind == 'vmcnt': v = n if v is None else min(v, n)
            else: l = n if l is None else min(l, n)
            out[pos] = I('s_waitcnt ' + ' '.join(([f'vmcnt({v})'] if v is not None else []) + ([f'lgkmcnt({l})'] if l is not None else [])))
        else:
            out.insert(pos, I(f's_waitcnt {kind}({n})'))
        del q[:idx + 1]
    for x in ins:
        if x.tag and isinstance(x.tag, tuple) and x.tag[0] == 'vmwait':
            idx = max([i for i, y in enumerate(vm) if y.tag in x.tag[1:]], default=-1)
            if idx >= 0: put('vmcnt', vm, idx)
            continue
        if x.tag and isinstance(x.tag, tuple) and x.tag[0] == 'dswait':
            idx = max([i for i, y in enumerate(ds) if set(y.wr) & x.tag[1]], default=-1)
            if idx >= 0: put('lgkmcnt', ds, idx)
            continue
        if x.op == 's_waitcnt':
            v, l = parse_wait(x.text)
            if v is not None and len(vm) > v: del vm[:len(vm) - v]
            if l is not None and len(ds) > l: del ds[:len(ds) - l]
            out.append(x); continue
        touched = set(x.rd) | set(x.wr)
        if touched:
            idx = max([i for i, y in enumerate(ds) if touched & set(y.wr)], default=-1)
            if idx >= 0 and not (x.cls == 'ds' and not (set(x.rd) & set(ds[idx].wr))): put('lgkmcnt', ds, idx)
            idx = max([i for i, y in enumerate(vm) if touched & set(y.wr)], default=-1)
            if idx >= 0 and not (x.cls == 'vm' and not (set(x.rd) & set(vm[idx].wr))): put('vmcnt', vm, idx)
        out.append(x)
        if x.cls == 'ds': ds.append(x)
        if x.cls == 'vm': vm.append(x)
        assert len(vm) <= 63, 'vmcnt overflow at ' + x.text
    return out

def need_states(p, c):
    n = 0
    pw = set(p.wr);
    if p.cls == 'm':
        big = 12 if p.op.startswith('v_smfmac') else 8
        if c.cls == 'm':
            ab = set(c.rd) - set(c.srcc) if not c.op.startswith('v_smfmac') else set(c.rd) - set(c.wr)
            if pw & ab: n = max(n, big)
            if pw & set(c.srcc) and (list(p.wr) != list(c.srcc) or p.op != c.op): n = max(n, big - 2)
            if pw & set(c.wr) and not (pw & set(c.srcc)): n = max(n, big - 2)
        elif c.cls in ('v', 'ds', 'vm'):
            if pw & (set(c.rd) | set(c.wr)): n = max(n, big)
            if c.cls == 'v' and set(p.srcc) & set(c.wr): n = max(n, 7 if big == 12 else 3)
    elif p.cls == 'v':
        vw = {r for r in pw if r[0] in 'va' and r != 'vcc'}; sw = pw - vw
        if c.cls == 'm' and vw & set(c.rd): n = max(n, 2)
        if p.op in TRANS and c.cls in ('v',) and c.op not in TRANS and vw & set(c.rd): n = max(n, 1)
        if c.op.startswith('v_permlane') and vw & set(c.rd): n = max(n, 2)
        if 'dpp' in c.text and vw & set(c.rd): n = max(n, 2)
        if c.op.startswith(('v_readfirstlane', 'v_readlane')) and vw & set(c.rd): n = max(n, 1)
        if sw & set(c.rd):
            if c.cls == 'vm': n = max(n, 5)
            if c.cls == 'v': n = max(n, 4 if c.op.startswith(('v_readlane', 'v_writelane')) else 2)
            if c.cls == 's': n = max(n, 1)
    elif p.cls == 's':
        if 'm0' in pw and c.cls == 'vm' and 'm0' in c.rd: n = max(n, 1)
    elif p.cls == 'vm':
        if len(p.data) >= 3 and set(p.data) & set(c.wr): n = max(n, 2)
    return n

def fix_hazards(ins, report=None):
    out = []
    for c in ins:
        if c.cls != 'x':
            dist = 0; short = 0
            for p in reversed(out):
                if dist >= 12: break
                if p.cls != 'x':
                    short = max(short, need_states(p, c) - dist)
                dist += p.nop
            if short > 0:
                if report is not None: report.append((short, c.text))
                out.append(I(f's_nop {short - 1}'))
        out.append(c)
    return out

def text(ins): return '\n'.join(x.text for x in ins) + '\n'

NOSCC = ('s_mov', 's_cselect', 's_mul_i32', 's_mul_hi', 's_waitcnt', 's_barrier', 's_nop', 's_branch', 's_cbranch', 's_setprio', 's_sleep', 's_endpgm', 's_movk', 's_getreg', 's_getpc')
def check_order(ins):
    last = -1; scc = None
    for x in ins:
        if x.seq is not None:
            assert x.seq > last, 'sequence order broken at ' + x.text
            last = x.seq
        if x.cls == 's':
            if x.op.startswith(('s_cselect', 's_cbranch_scc')): assert scc is not None and scc.op.startswith(('s_cmp', 's_bitcmp')), ('scc', x.text, scc)
            if x.op.startswith('s_addc'): assert scc.op == 's_add_u32', ('scc', x.text, scc)
            if not x.op.startswith(NOSCC): scc = x
def merge_waits(ins):
    out = []
    for x in ins:
        if x.op == 's_waitcnt' and out and out[-1].op == 's_waitcnt':
            a, b = parse_wait(out[-1].text), parse_wait(x.text)
            mn = lambda p, q: q if p is None else p if q is None else min(p, q)
            v, l = mn(a[0], b[0]), mn(a[1], b[1])
            out[-1] = I('s_waitcnt ' + ' '.join(([f'vmcnt({v})'] if v is not None else []) + ([f'lgkmcnt({l})'] if l is not None else [])))
        else: out.append(x)
    return out
def finish(ins, rep=None):
    out = fix_hazards(merge_waits(auto_waits(ins)), rep)
    check_order(out)
    return out
def est_cycles(ins):
    t = 0; mf = -100; prev = None
    for x in ins:
        if x.cls == 'x': continue
        if x.cls == 'm':
            t = max(t, mf + 16); mf = t; t += 4
        elif x.cls in ('s', 'sm'):
            t += 4 * x.nop
        else:
            t = max(t, mf + 8)
            if x.cls in ('ds', 'vm') and prev is not None and prev.cls == 'v': t += 8
            t += 8 if x.op in TRANS else 4
        prev = x
    return t

STAMP = [False]
def stamp(n):
    if not STAMP[0]: return []
    return [I('s_waitcnt lgkmcnt(0)'), I('s_memtime s[96:97]'), I('s_memrealtime s[98:99]'), I('s_waitcnt lgkmcnt(0)'),
            I(f's_mov_b32 s{78 + 2*n}, s96'), I(f's_mov_b32 s{79 + 2*n}, s98')]
def stamp_dump(region, wsreg):
    if not STAMP[0]: return []
    L = []; A = lambda t: L.append(I(t))
    A(f's_add_u32 s4, s{wsreg}, {(64 << 20) + region * 65536}'); A(f's_addc_u32 s5, s{wsreg+1}, 0'); A('s_and_b32 s5, s5, 0xffff')
    A('s_mov_b32 s6, 65536'); A('s_mov_b32 s7, 0x20000')
    A('s_lshl_b32 s3, s2, 7'); A('s_lshl_b32 s8, s48, 16'); A('s_add_u32 s3, s3, s8')
    A('s_nop 7'); A('s_nop 7')
    A('v_mov_b32 v0, 0')
    for k in range(18):
        A(f'v_mov_b32 v1, s{78 + k}'); A(f'buffer_store_dword v1, v0, s[4:7], s3 offen offset:{4*k}')
    return L

import os
OPT = {}
def opt(k, d):
    return type(d)(OPT.get(k, d))

def vmwait(*tags): return I('', tag=('vmwait',) + tags)
def dswait(*toks): return I('', tag=('dswait', {r for t in toks for r in regs_of(t)}))
def est_cycles(ins):
    t = 0; mf = -100; prev = None; nds = 0; vsum = 0; pv = 0; lastw = {}
    for x in ins:
        if x.cls == 'x': continue
        if x.cls == 'm':
            t = max(t, mf + 16); mf = t; t += 4; nds = 0; pv = vsum; vsum = 0
        elif x.cls in ('s', 'sm'):
            for r in x.wr: lastw[r] = t
            t += 12 if x.op == 's_barrier' else 4 * x.nop
        else:
            t = max(t, mf + 8)
            if x.cls in ('ds', 'vm') and prev is not None and prev.cls == 'v': t += 8
            if x.cls == 'vm': t = max([t] + [lastw[r] + 12 for r in x.rd if r in lastw])
            if x.cls == 'ds':
                nds += 1
                if nds >= 2 and pv < 8: t += 4
            c = 8 if x.op in TRANS else 20 if x.op.startswith(('buffer_store_dwordx4', 'ds_write_b128')) else 4
            if x.cls == 'v': vsum += c
            t += c
        prev = x
    return t
```

```python
from asmlib import *

PIECE = 1056; SLOT = 16 * PIECE; BLK = 8 * PIECE; KT = 4 * PIECE
KR = 0; VR = 4 * SLOT; XR = VR; XW = 20 * PIECE; EX = 8 * SLOT
EXL = EX + 16384
EXF = EXL + 1024
LDS_ATTN = 153600
MF = 'v_mfma_f32_16x16x32_bf16'
SCALE = 0x3e0293ee
import struct, math
assert struct.unpack('<I', struct.pack('<f', math.log2(math.e) / math.sqrt(128)))[0] == SCALE, hex(struct.unpack('<I', struct.pack('<f', math.log2(math.e) / math.sqrt(128)))[0])

def vr(b, n=4): return f'v[{b}:{b+n-1}]'
def ar(b, n=4): return f'a[{b}:{b+n-1}]'

sX, sWq, sK, sV, sO = 28, 32, 36, 40, 44
def srd(b): return f's[{b}:{b+3}]'
sW = 48; sP = 49; sT = 50; sXB = 51; sXXB = 52; sWB = 53; sXM = 54; sWM = 55
sKo = 56; sVo = 57; sKm = 58; sVm = 59; sKd = 60; sVd = 61; sLoop = 62; sHead = 63
sOe = 64; sOo = 65; sOX = 66; sKm0 = 67; sVm0 = 68; sKmE = 69; sVmE = 70; sScale = 71
sBad = 72
sLo = 74; sHi = 75; sMode = 76; sT2 = 77
sSq = 62; sSq2 = 72; sXBj = 73; sXXBj = 14; sWBj = 16; sT3 = 17
vKA = (240, 241); vKB = (242, 243); vVA = (244, 245); vVB = (246, 247)
vDK = 248; vL16 = 249; vW = (250, 251); vXr = 252; vDW = 253; vDX = 254; vTmp = 255
vEXw = 250; vEXr = 251; vLw = 252; vLr = 253
def O(i, t): return 32 * i + 4 * t
def P(par, i): return 128 + 36 * par + 8 * i
def S(n): return 200 + 4 * (n % 6)
vOnes = 224; vIdx = 228; vLX = 229; vRL = 230
vM = 235
vT = 200
def Q(i, s, hh=0): return 80 * hh + 16 * i + 4 * s
def OX(t): return 160 + 4 * t
def Lr(i): return 192 + 4 * i
def KF(buf, s): return 208 + 16 * buf + 4 * s
def VF(buf, blk): return 240 + 8 * buf + 4 * blk

def qorder(ph):
    E = opt('qE', 1); o = []
    for t in range(9):
        p = t + ((ph - t) % 4); t0 = max(p - E, 0)
        o.append(t if p > 8 or t < t0 else p if t == t0 else t - 1)
    if opt('qrot', 0): o = [(t + 2 * ph) % 9 for t in range(9)]
    assert sorted(o) == list(range(9)), o
    return o
def sig(j): return f's_bfe_u32 s{sT3}, s{sSq}, {(4 << 16) | (4 * j):#x}' if j < 8 else f's_mov_b32 s{sT3}, s{sSq2}'
def STF(): return ' sc1' if opt('sc1', 1) else ''
def setup():
    L = []
    A = lambda t: L.append(I(t))
    A('s_cmp_ge_u32 s2, 256'); A('s_cbranch_scc1 L_attn_end')
    A('s_load_dwordx16 s[4:19], s[0:1], 0'); A('s_load_dwordx4 s[20:23], s[0:1], 64'); A('s_load_dwordx2 s[24:25], s[0:1], 96')
    A('v_lshrrev_b32 v1, 6, v0'); A('v_and_b32 v0, 63, v0')
    A(f'v_readfirstlane_b32 s{sW}, v1')
    A('v_lshrrev_b32 v1, 4, v0'); A('v_bfe_u32 v2, v0, 2, 2'); A('v_and_b32 v3, 3, v0')
    A(f'v_lshlrev_b32 v{vL16}, 4, v0')
    A(f's_and_b32 s{sP}, s{sW}, 1')
    A('s_and_b32 s26, s2, 7'); A('s_lshr_b32 s3, s2, 3')
    A('s_and_b32 s27, s26, 1'); A('s_lshl_b32 s27, s27, 2'); A(f's_lshr_b32 s{sT}, s3, 3'); A(f's_add_u32 s27, s27, s{sT}')
    A('s_and_b32 s3, s3, 7'); A(f's_and_b32 s{sT}, s26, 2'); A(f's_lshl_b32 s{sT}, s{sT}, 2'); A(f's_add_u32 s3, s3, s{sT}')
    A('s_lshr_b32 s26, s26, 2')
    A(f's_add_u32 s{sT}, s27, s3'); A(f's_and_b32 s{sT}, s{sT}, 3')
    for ph in range(4):
        o = qorder(ph); lo = sum(v << (4 * n) for n, v in enumerate(o[:8]))
        if ph == 0: A(f's_mov_b32 s{sSq}, {lo:#x}'); A(f's_mov_b32 s{sSq2}, {o[8]}')
        else: A(f's_cmp_eq_u32 s{sT}, {ph}'); A(f's_cselect_b32 s{sSq}, {lo:#x}, s{sSq}'); A(f's_cselect_b32 s{sSq2}, {o[8]}, s{sSq2}')
    A('v_lshlrev_b32 v4, 6, v1'); A('v_lshl_add_u32 v4, v3, 4, v4')
    A(f'v_lshl_add_u32 v{vDK}, v2, 8, v4'); A(f'v_lshl_add_u32 v{vDW}, v2, 13, v4')
    A('v_and_b32 v5, 1, v1'); A('v_lshl_add_u32 v5, v5, 3, v2'); A('v_mul_u32_u24 v5, 1152, v5')
    A('v_lshrrev_b32 v6, 1, v1'); A('v_lshl_add_u32 v5, v6, 6, v5'); A(f'v_lshl_add_u32 v{vDX}, v3, 4, v5')
    A(f's_mul_i32 s{sXB}, s{sW}, {64*1152}')
    A(f's_lshr_b32 s{sT}, s{sW}, 1'); A(f's_mul_i32 s{sXXB}, s{sT}, {16*1152}'); A(f's_add_u32 s{sXXB}, s{sXXB}, {256*1152}')
    A(f's_add_u32 s{sOX}, s{sT}, 16'); A(f's_lshl_b32 s{sOX}, s{sOX}, 12')
    A(f's_lshl_b32 s{sWB}, s{sW}, 17')
    A(f's_mul_i32 s{sXM}, s{sW}, {XW}'); A(f's_add_u32 s{sXM}, s{sXM}, {XR}')
    A(f's_mul_i32 s{sWM}, s{sW}, {KT}')
    A('s_waitcnt lgkmcnt(0)')
    A('s_cmp_eq_u32 s26, 0')
    A('s_cselect_b64 s[4:5], s[4:5], s[14:15]'); A('s_cselect_b64 s[6:7], s[6:7], s[16:17]')
    A('s_cselect_b64 s[8:9], s[8:9], s[18:19]'); A('s_cselect_b64 s[10:11], s[10:11], s[20:21]'); A('s_cselect_b64 s[12:13], s[12:13], s[22:23]')
    def mksrd(d, ptr, off, num):
        A(f's_add_u32 s{d}, s{ptr}, s{off}'); A(f's_addc_u32 s{d+1}, s{ptr+1}, 0'); A(f's_and_b32 s{d+1}, s{d+1}, 0xffff')
        if isinstance(num, int): A(f's_mov_b32 s{d+2}, {num}')
        else: A(f's_sub_u32 s{d+2}, {num[0]}, s{off}')
        A(f's_mov_b32 s{d+3}, 0x20000')
    A(f's_mul_i32 s{sT}, s27, 331776'); mksrd(sX, 4, sT, 331776)
    A(f's_lshl_b32 s{sT}, s3, 9'); mksrd(sWq, 10, sT, (576 * 8192,))
    return L, mksrd_late()

def mksrd_late():
    L = []
    A = lambda t: L.append(I(t))
    def mksrd(d, ptr, off, num):
        A(f's_add_u32 s{d}, s{ptr}, s{off}'); A(f's_addc_u32 s{d+1}, s{ptr+1}, 0'); A(f's_and_b32 s{d+1}, s{d+1}, 0xffff')
        if isinstance(num, int): A(f's_mov_b32 s{d+2}, {num}')
        else: A(f's_sub_u32 s{d+2}, {num[0]}, s{off}')
        A(f's_mov_b32 s{d+3}, 0x20000')
    A(f's_lshl_b32 s{sT}, s27, 4'); A(f's_add_u32 s{sT}, s{sT}, s3'); A(f's_lshl_b32 s{sT}, s{sT}, 19')
    mksrd(sK, 6, sT, 524288); mksrd(sV, 8, sT, 524288)
    A(f's_mul_i32 s{sT}, s26, {144*131072}'); A(f's_mul_i32 s{sT2}, s27, {18*4096}'); A(f's_add_u32 s{sT}, s{sT}, s{sT2}')
    A(f's_mul_i32 s{sT2}, s3, {2*144*4096}'); A(f's_add_u32 s{sT}, s{sT}, s{sT2}')
    mksrd(sO, 24, sT, (288 * 131072,))
    A(f's_lshl_b32 s20, s{sP}, 8'); A('s_sub_u32 s21, 256, s20')
    A(f's_mul_i32 s22, s{sP}, {BLK}'); A(f's_sub_u32 s23, {BLK}, s22')
    A(f'v_mul_u32_u24 v4, {PIECE}, v2'); A('v_lshl_add_u32 v4, v3, 6, v4'); A('v_lshl_add_u32 v4, v1, 4, v4')
    A(f'v_mul_u32_u24 v5, {PIECE}, v1'); A('v_lshl_add_u32 v5, v2, 6, v5'); A('v_lshl_add_u32 v5, v3, 3, v5'); A(f'v_add_u32 v5, {VR}, v5')
    for (regs, base) in ((vKA + vKB, 4), (vVA + vVB, 5)):
        for k, reg in enumerate(regs):
            A(f's_add_u32 s{sT}, s{20 + (k & 1)}, s{22 + (k >> 1)}'); A(f'v_add_u32 v{reg}, s{sT}, v{base}')
    A(f'v_mul_u32_u24 v6, {2*PIECE}, v1'); A('v_and_b32 v7, 1, v1'); A('v_lshl_add_u32 v6, v7, 3, v6')
    A('v_lshl_add_u32 v6, v2, 6, v6'); A('v_lshl_add_u32 v6, v3, 4, v6')
    A(f'v_add_u32 v{vW[0]}, s20, v6'); A(f'v_add_u32 v{vW[1]}, s21, v6')
    A('v_and_b32 v7, 1, v2'); A(f'v_mul_u32_u24 v7, {PIECE}, v7'); A('v_lshrrev_b32 v8, 1, v2'); A('v_lshl_add_u32 v7, v8, 8, v7')
    A('v_lshl_add_u32 v7, v3, 6, v7'); A('v_lshl_add_u32 v7, v1, 4, v7'); A(f'v_add_u32 v{vXr}, s{sXM}, v7')
    A(f's_lshl_b32 s18, s{sW}, 12'); A('s_xor_b32 s19, s18, 4096'); A(f's_add_u32 s18, s18, {EX}'); A(f's_add_u32 s19, s19, {EX}')
    A(f's_mov_b32 s{sKm0}, s{sWM}'); A(f's_add_u32 s{sVm0}, s{sWM}, {VR}')
    A(f's_add_u32 s{sKmE}, s{sKm0}, {4*SLOT}'); A(f's_add_u32 s{sVmE}, s{sVm0}, {4*SLOT}')
    A(f's_lshl_b32 s{sKo}, s{sW}, 12'); A(f's_mov_b32 s{sVo}, s{sKo}')
    A(f's_mov_b32 s{sKm}, s{sKm0}'); A(f's_mov_b32 s{sVm}, s{sVm0}')
    A(f's_mov_b32 s{sKd}, {2*SLOT}'); A(f's_mov_b32 s{sVd}, {2*SLOT}')
    A(f's_lshl_b32 s{sT}, s{sW}, 14'); A(f's_lshl_b32 s{sT2}, s{sP}, 10')
    A(f's_add_u32 s{sOe}, s{sT}, s{sT2}'); A(f's_add_u32 s{sOX}, s{sOX}, s{sT2}')
    A(f's_sub_u32 s{sT2}, 1024, s{sT2}'); A(f's_add_u32 s{sOo}, s{sT}, s{sT2}')
    A(f's_mov_b32 s{sScale}, {SCALE:#x}'); A(f's_mov_b32 s{sHead}, 0'); A(f's_mov_b32 s{sMode}, 0')
    A(f's_mov_b32 s{sLo}, 0x21800000'); A(f's_mov_b32 s{sHi}, 0x5d800000')
    return L

def dma_x(j):
    ops = []
    for pcs in range(10):
        tile, pc = pcs >> 1, pcs & 1
        imm = (pcs & 3) * PIECE
        s = []
        if pcs == 0: s += [sig(j), f's_lshl_b32 s{sT3}, s{sT3}, 7', f's_add_u32 s{sXBj}, s{sXB}, s{sT3}', f's_add_u32 s{sXXBj}, s{sXXB}, s{sT3}']
        if pcs & 3 == 0: s.append(f's_add_u32 m0, s{sXM}, {(j & 1) * 10 * PIECE + pcs * PIECE}')
        base, row = (sXBj, 16 * tile + 4 * pc) if tile < 4 else (sXXBj, 4 * pc)
        s.append(f's_add_u32 s{sT}, s{base}, {row * 1152 - imm}')
        ops.append((s, I(f'buffer_load_dwordx4 v{vDX}, {srd(sX)}, s{sT} offen offset:{imm} lds', tag=f'x{j}')))
    return ops
def dma_w(hs):
    ops = []; j, hh = hs >> 1, hs & 1
    for jj in range(4):
        imm = jj * PIECE + 8 * (jj >> 1)
        s = []
        if jj == 0 and hh == 0: s += [sig(j), f's_lshl_b32 s{sT3}, s{sT3}, 19', f's_add_u32 s{sWBj}, s{sWB}, s{sT3}']
        if jj == 0: s.append(f's_add_u32 m0, s{sWM}, {((hs + 2) & 3) * SLOT}')
        s.append(f's_add_u32 s{sT}, s{sWBj}, {4 * jj * 8192 + hh * 256 - imm}')
        ops.append((s, I(f'buffer_load_dwordx4 v{vDW}, {srd(sWq)}, s{sT} offen offset:{imm} lds', tag=f'w{hs}')))
    return ops
def dma_kv(which, tag):
    so, sm, s0, sE, d = (sKo, sKm, sKm0, sKmE, sK) if which == 'K' else (sVo, sVm, sVm0, sVmE, sV)
    ops = []
    for jj in range(4):
        s = [f's_add_u32 m0, s{sm}, {32 * jj}'] if jj else [f's_mov_b32 m0, s{sm}']
        ops.append((s, I(f'buffer_load_dwordx4 v{vDK}, {srd(d)}, s{so} offen offset:{1024 * jj} nt lds', tag=tag)))
    post = [f's_add_u32 s{so}, s{so}, 16384', f's_add_u32 s{sm}, s{sm}, {SLOT}', f's_cmp_eq_u32 s{sm}, s{sE}', f's_cselect_b32 s{sm}, s{s0}, s{sm}']
    return ops, post

def flat_ops(ops, post=()):
    L = []
    for s, d in ops: L += [I(x) for x in s] + [d]
    return L + [I(x) for x in post]

SEQ = [0]
def seqd(x):
    x = mk(x); SEQ[0] += 1; x.seq = SEQ[0]; return x
def place_ops(G, ops, lo, step, post=()):
    g = lo; nxt = lo
    for s, d in ops:
        g = max(g, nxt - len(s))
        for x in s: g = G.place(seqd(x), g) + 1
        g = G.place(seqd(d), g, g + 3)
        G.lastdma = g; nxt = g + step; g += 1
    for x in post: g = G.place(seqd(x), g) + 1
    return g

def place_stream(G, pend):
    n = len(G.m); tail = []; cur = 0; mine = {}
    for g, x in pend:
        x = seqd(x); cur = max(cur, g)
        rank = 0 if x.cls == 's' else 1 if x.cls in ('ds', 'vm') else 2
        big = x.op.startswith(('buffer_store_dwordx4', 'ds_write_b128'))
        while cur < n:
            ok = G.cost(cur, x) <= (20 if big else 8)
            if x.cls == 'vm' and any(set(y.wr) & set(x.rd) for y in G.sh[cur]): ok = False
            if ok and rank >= mine.get(cur, -1): break
            cur += 1
        if cur < n: G.place(x, cur, force=True); mine[cur] = rank
        else: tail.append(x)
    return tail
def packed(L):
    out = []; k = 0
    while k < len(L):
        x = L[k]; y = L[k + 1] if k + 1 < len(L) else None
        if y is not None and x.op == y.op == 'v_mul_f32' and x.rd[0] == y.rd[0] and x.rd[0][0] == 'v':
            a, b, f = int(x.wr[0][1:]), int(y.wr[0][1:]), int(x.rd[0][1:])
            if a % 2 == 0 and b == a + 1:
                sel = 'op_sel:[0,1] op_sel_hi:[1,1]' if f & 1 else 'op_sel:[0,0] op_sel_hi:[1,0]'
                out.append(I(f'v_pk_mul_f32 {vr(a, 2)}, {vr(a, 2)}, {vr(f & ~1, 2)} {sel}')); k += 2; continue
        out.append(x); k += 1
    return out

def acc(i, hh, s, u):
    if i == 4: return ('v', (52 + (hh * 2 + (s >> 1)) * 2 + u) * 4)
    n = ((hh * 4 + s) * 4 + i) * 2 + u
    if n < 52: return ('v', n * 4)
    return ('a', 160 + (n - 52) * 4)
def reg(k, n=4): return f'{k[0]}[{k[1]}:{k[1]+n-1}]'
def XF(buf, i, ks): return (80, 0)[buf] + 8 * i + 4 * ks
def WF(buf, ks): return 120 + 8 * buf + 4 * ks

def w_reads(tau):
    hs, k = tau >> 3, tau & 7; s, u = k >> 1, k & 1
    L = []
    for ks in range(2):
        for h in range(2):
            off = ((hs + 2) & 3) * SLOT + ks * BLK + h * PIECE + (s >> 1) * 512 + u * 8
            L.append(f'ds_read_b64_tr_b16 {ar(WF(tau % 3, ks) + 2 * h, 2)}, v{vW[s & 1]} offset:{off}')
    return L
def x_reads(j):
    return [f'ds_read_b128 {ar(XF(j & 1, i, ks))}, v{vXr} offset:{(j & 1) * 10 * PIECE + i * 2 * PIECE + ks * 512}' for i in range(5) for ks in range(2)]
def k_reads(m, kt):
    regs = vKA if kt < 2 else vKB
    return [f'ds_read_b128 {ar(KF(kt & 1, s))}, v{regs[s & 1]} offset:{(m & 1) * SLOT + (kt & 1) * KT + (s >> 1) * 512}' for s in range(4)]
def v_reads(m, t):
    T, tt = t >> 1, t & 1
    return [f'ds_read_b64_tr_b16 {ar(VF(t & 1, blk) + 2 * u, 2)}, v{(vVA, vVB)[blk][T & 1]} offset:{(m & 1) * SLOT + u * KT + (T >> 1) * 512 + tt * 32}'
            for blk in range(2) for u in range(2)]
def touch(ptr, nbytes, first, dst, vaddr):
    L = []; A = lambda t: L.append(I(t))
    A(f's_mov_b32 s16, s{ptr}'); A(f's_and_b32 s17, s{ptr+1}, 0xffff'); A(f's_mov_b32 s18, {nbytes}'); A('s_mov_b32 s19, 0x20000')
    A(f's_add_u32 s{sT2}, s15, {first}'); A(f's_lshl_b32 s{sT2}, s{sT2}, 13')
    A(f'buffer_load_dword v{dst}, v{vaddr}, s[16:19], s{sT2} offen')
    return L

def conv_ops(i, hh, s, tmp):
    k0, k1 = acc(i, hh, s, 0), acc(i, hh, s, 1); L = []
    assert k0[0] == k1[0] and k1[1] == k0[1] + 4
    if k0[0] == 'a':
        L += [f'v_accvgpr_read_b32 v{tmp + r}, a{k0[1] + r}' for r in range(8)]; b = tmp
    else: b = k0[1]
    L += [f'v_mul_f32 v{b + r}, v{vTmp}, v{b + r}' for r in range(8)]
    L += [f'v_cvt_pk_bf16_f32 v{b + r}, v{b + 2*r}, v{b + 2*r + 1}' for r in range(4)]
    wr = [f'v_accvgpr_write_b32 a{Q(i, s, hh) + r}, v{b + r}' for r in range(4)]
    ex = [f'ds_write_b128 v{vDX}, {vr(b)} offset:{(hh * 2 + (s >> 1)) * 1024}'] if i == 4 else []
    return L, wr, ex

def qproj(late):
    L = []
    L += flat_ops(dma_x(0)) + flat_ops(dma_w(0)) + flat_ops(dma_w(1)) + flat_ops(dma_x(1)) + flat_ops(dma_w(2)) + flat_ops(dma_w(3))
    L += [I('s_lshl_b32 s15, s27, 4'), I('s_add_u32 s15, s15, s3'), I('s_lshl_b32 s15, s15, 2'), I(f's_add_u32 s15, s15, s{sW}')]
    L += late + [I(f'v_mov_b32 v{vTmp}, s{sScale}')]
    L += [vmwait('x0', 'w0'), I('s_barrier')] + stamp(1)
    L += [I(x) for x in x_reads(0) + w_reads(0) + w_reads(1)]
    L += [I('s_waitcnt lgkmcnt(8)')] + flat_ops(dma_x(2))
    G = Gaps(); start = {}
    for tau in range(144):
        hs, k = tau >> 3, tau & 7; j, hh = hs >> 1, hs & 1; s, u = k >> 1, k & 1
        start[tau] = len(G.m)
        for i in range(5 if s % 2 == 0 else 4):
            d = reg(acc(i, hh, s, u))
            for ks in range(2):
                c = '0' if (j == 0 and ks == 0) else d
                G.add(f'{MF} {d}, {ar(WF(tau % 3, ks))}, {ar(XF(j & 1, i, ks))}, {c}')
    start[144] = len(G.m)
    bars = {}
    for hs in range(18):
        bars[hs] = G.barrier(start[hs * 8 + 6] - 1, [vmwait(f'w{hs+1}' if hs < 17 else 'K0'), 's_waitcnt lgkmcnt(0)'])
        assert bars[hs] == start[hs * 8 + 6] - 1
    for tau in range(1, 144):
        if tau % 8 not in (6, 7): G.sh[start[tau] - 1].append(dswait(ar(WF(tau % 3, 0), 8)))
    for hs in range(18):
        j, hh = hs >> 1, hs & 1; bar = bars[hs]
        for k in range(8):
            tau = hs * 8 + k
            if tau + 2 < 144:
                g = max(start[tau] - 1, 0)
                for x in w_reads(tau + 2): g = G.place(x, g) + 1
                if k == 5: assert g <= bar - 1
        if hh == 0 and j < 8:
            g = G.place(vmwait(f'x{j+1}'), start[hs * 8] + 2)
            for x in x_reads(j + 1): g = G.place(x, g) + 2
            assert g <= bar
        g = bar + 1; st = opt('qstep', 4)
        if hs + 4 < 18: g = place_ops(G, dma_w(hs + 4), g, st)
        elif hs < 17:
            if hs == 16:
                ops, post = dma_kv('V', 'V0'); g = place_ops(G, ops, g, st, post)
            ops, post = dma_kv('K', f'K{hs - 14}'); g = place_ops(G, ops, g, st, post)
        if hh == 0 and j + 3 < 9: g = place_ops(G, dma_x(j + 3), g, st)
        if hs < 17: assert g < bars[hs + 1], (hs, g, bars[hs + 1])
    g = bars[17] + 1
    for x in k_reads(0, 0): g = G.place(x, g) + 1
    pend = [(start[16 * 8], f'v_add_u32 v{vDX}, s18, v{vL16}')]
    late_wr = []; n = 0
    for hh in range(2):
        for s in range(4):
            g = start[(16 + hh) * 8 + 2 * s + 2] + 4
            for i in ([4, 0, 1, 2, 3] if s % 2 == 0 else range(4)):
                a, wr, ex = conv_ops(i, hh, s, (n & 1) * 8); n += 1
                pend += [(g, x) for x in a + ex]
                if hh == 0: pend += [(g, x) for x in wr]
                elif acc(i, hh, s, 0)[0] == 'a': pend += [(len(G.m), x) for x in wr]
                else: late_wr += wr
    SEQ0 = SEQ[0]
    tail = place_stream(G, pend)
    code = G.emit()
    for x in code + tail:
        if x.seq is not None and x.seq > SEQ0: x.seq = None
    L += code + stamp(2)
    last_ex = max(k for k, x in enumerate(tail) if x.cls == 'ds') if any(x.cls == 'ds' for x in tail) else -1
    ex = [I(f'v_add_u32 v{vEXr}, s19, v{vL16}'), I(f'v_mov_b32 v{vEXw}, v{vDX}'), I('s_waitcnt lgkmcnt(0)'), I('s_barrier')]
    ex += [I(f'ds_read_b128 {ar(Q(4, s2 + 1, h2))}, v{vEXr} offset:{(h2 * 2 + (s2 >> 1)) * 1024}') for h2 in range(2) for s2 in (0, 2)]
    cut = min(last_ex + 24, len(tail))
    L += packed(tail[:cut]) + ex + packed(tail[cut:]) + [I(x) for x in late_wr]
    return L, est_cycles(code)

def qconv():
    L = []; A = lambda t: L.append(I(t))
    A(f'v_lshrrev_b32 v0, 4, v{vL16}')
    A('v_and_b32 v1, 1, v0'); A('v_cmp_eq_u32 vcc, 1, v1'); A('v_mov_b32 v2, 0x44444444'); A('v_mov_b32 v3, 0xeeeeeeee')
    A(f'v_cndmask_b32 v{vIdx}, v2, v3, vcc')
    A('v_and_b32 v1, 2, v0'); A('v_cmp_eq_u32 vcc, 0, v1'); A('v_mov_b32 v2, 0x3f803f80'); A('v_and_b32 v4, 15, v0')
    A(f'v_cndmask_b32 v{vOnes}, 0, v2, vcc')
    for r in range(1, 4): A(f'v_mov_b32 v{vOnes + r}, v{vOnes}')
    A(f'v_lshlrev_b32 v4, 5, v4'); A(f'v_add_u32 v{vLr}, {EXL}, v4')
    A(f's_lshr_b32 s{sT}, s{sW}, 1'); A(f's_lshl_b32 s{sT}, s{sT}, 9'); A(f's_lshl_b32 s{sT2}, s{sP}, 4'); A(f's_add_u32 s{sT}, s{sT}, s{sT2}')
    A('v_lshrrev_b32 v5, 4, v0'); A(f'v_lshl_add_u32 v5, v5, 2, v{vLr}'); A(f'v_add_u32 v{vLw}, s{sT}, v5')
    for i in range(4):
        for r in range(4): A(f'v_accvgpr_write_b32 a{Lr(i) + r}, 0')
    A(f'v_mov_b32 v{vLX}, 0')
    A('s_waitcnt lgkmcnt(0)')
    return L

CH = [(kt, i) for kt in range(4) for i in range(5 if kt < 2 else 4)]
def softmax_ops(n, par, sub):
    kt, i = CH[n]; b = S(n)
    pre = [f'v_add_f32 v{b + r}, v{vM + i}, v{b + r}' for r in range(4)] if sub else []
    ex = [f'v_exp_f32 v{b + r}, v{b + r}' for r in range(4)]
    pd = P(par, i) + 2 * kt
    cv = [f'v_cvt_pk_bf16_f32 v{pd + h}, v{b + 2*h}, v{b + 2*h + 1}' for h in range(2)]
    ad = [f'v_add_f32 v{vLX}, v{vLX}, v{b + r}' for r in range(4)] if i == 4 else []
    return pre, ex, cv, ad

def qk_chain(G, n):
    kt, i = CH[n]; d = vr(S(n))
    for s in range(4): g = G.add(f'{MF} {d}, {ar(KF(kt & 1, s))}, {ar(Q(i, s))}, {d if s else 0}')
    return g
def pv_items(par, first, sm_at):
    items = []
    for t in range(8):
        order = [0, 1, 2, 4, 3] if t == 0 else [0, 1, 2, 3, 4]
        for i in order:
            if i < 4:
                d = vr(O(i, t))
                items.append((t, [f'{MF} {d}, {ar(VF(t & 1, 0))}, {vr(P(par, i))}, {0 if first else d}',
                                  f'{MF} {d}, {ar(VF(t & 1, 1))}, {vr(P(par, i) + 4)}, {d}']))
            else:
                d = ar(OX(t))
                items.append((t, [f'{MF} {d}, {ar(VF(t & 1, 0))}, {vr(P(par, 4))}, {0 if first else d}']))
        for i in sm_at.get(t, []):
            items.append((-1 - i, [f'v_smfmac_f32_16x16x64_bf16 {ar(Lr(i))}, {vr(vOnes)}, {vr(P(par, i), 8)}, v{vIdx}']))
    return items

def place_softmax(G, n, par, g0, step, sub, force=False):
    pre, ex, cv, ad = softmax_ops(n, par, sub)
    ge = []
    g = g0
    for r in range(4):
        if sub: G.place(pre[r], g, force=True); g = G.place(ex[r], g, force=True)
        else: g = G.place(ex[r], g, force=force)
        ge.append(g); g += step
    return ge, cv, ad

def toggles(regs, sd):
    return [f'v_add_u32 v{r}, s{sd}, v{r}' for r in regs]

def stash(k): return 80 + 4 * k
def o_soff(k):
    if k >= 16: return f's_mov_b32 s{sT}, s{sOX}', (k - 16) * 2048
    T, i = k >> 2, k & 3
    return f's_add_u32 s{sT}, s{(sOe, sOo)[T & 1]}, {i * 4096}', (T >> 1) * 2048

def stage(kind, s, sub=False, var='', extra=()):
    G = Gaps(); par = s & 1; npar = par ^ 1
    cend = {}; cbeg = {}; tend = {}; tbeg = {}; smg = {}
    tail = []
    if kind == 'P':
        for n in range(18): cbeg[n] = len(G.m); cend[n] = qk_chain(G, n)
    else:
        items = pv_items(par, s == 0, {1: [0], 3: [1], 5: [2], 6: [3]} if kind == 'S' else {0: [0, 1, 2, 3]})
        tot = sum(len(x[1]) for x in items); done = 0; k = 0
        for n in range(18):
            if kind == 'S': cbeg[n] = len(G.m); cend[n] = qk_chain(G, n)
            while k < len(items) and (done + len(items[k][1]) / 2.0 <= (n + 1) * tot / 18.0 + 1e-9 or n == 17):
                tbeg.setdefault(items[k][0], len(G.m))
                for x in items[k][1]: g = G.add(x)
                if items[k][0] >= 0: tend[items[k][0]] = g
                else: smg[-1 - items[k][0]] = g
                done += len(items[k][1]); k += 1
    last = len(G.m) - 1
    later = []
    F = kind == 'P'
    if kind != 'P':
        later.append(place_softmax(G, 17, par, 0, 2 if kind == 'S' else 1, sub))
    if kind == 'S':
        for n in range(17): later.append(place_softmax(G, n, npar, cbeg[n + 1], 2, sub))
    if kind == 'P':
        for n in range(16): later.append(place_softmax(G, n, npar, cbeg[n + 2], 1, sub, force=True))
        pre, ex, cv, ad = softmax_ops(16, npar, sub); tail = [I(x) for x in pre + ex + cv]
    if kind != 'D':
        w = 's_waitcnt vmcnt(12)' if not var else vmwait('V' if var == 'L13' else 'V31')
        if F or sub: bar = cend[14]; G.sh[bar] += [mk(w), I('s_barrier')]
        else: bar = G.barrier(cend[14], [w])
        for kt, n in ((1, 5), (2, 10), (3, 14)): G.sh[cbeg[n] - 1].append(dswait(ar(KF(kt & 1, 0), 16)))
        if var != 'L14': G.sh[last - 1].append(dswait(ar(KF(0, 0), 16)))
    if kind != 'P':
        for t in range(8):
            if tbeg[t] > 0: G.sh[tbeg[t] - 1].append(dswait(ar(VF(t & 1, 0), 8)))
    if kind != 'P':
        lastv = {}
        for t in range(1, 8):
            g = tend[t - 2] if t >= 2 else 0
            for x in v_reads(s, t): g = G.place(x, g) + (1 if kind == 'D' else 0)
            lastv[t] = g
    if kind != 'D':
        g = max(tend[6], bar + 1) if kind == 'S' else bar + 5
        for x in v_reads(s + 1, 0): g = G.place(x, g, force=F) + (1 if F else 0)
        first_of = {1: -1, 2: 4, 3: 9}
        lastk = {}
        for kt in (1, 2, 3):
            g = cend[first_of[kt]] if first_of[kt] >= 0 else 0
            for x in k_reads(s + 1, kt): g = G.place(x, g, force=F) + (1 if F else 2)
            lastk[kt] = g
        g = bar + 1
        if var != 'L14':
            for x in k_reads(s + 2, 0): g = G.place(x, g, force=F) + 1
            assert g < last - 1
    for ge, cv, ad in later:
        if F:
            G.place(cv[0], ge[2], force=True)
            if ge[3] + 1 < len(G.m): G.place(cv[1], ge[3] + 1, force=True)
            else: tail.insert(1, I(cv[1]))
        elif kind == 'D':
            G.place(cv[0], ge[3] + 1, force=True); G.place(cv[1], ge[3] + 2, force=True)
        else:
            G.place(cv[0], ge[1] + 1, ge[1] + 9); G.place(cv[1], ge[3] + 1, ge[3] + 5)
    if kind != 'D':
        step = 13 if kind == 'S' else 6
        if var == '':
            ops, post = dma_kv('V', 'V'); g = place_ops(G, ops, 2, step, post)
            ops, post = dma_kv('K', 'K'); g = place_ops(G, ops, G.lastdma + step - 1, step, post)
            assert G.lastdma < bar - 1, (G.lastdma, bar)
        else:
            g = 2
            if var == 'L13': ops, post = dma_kv('V', 'V31'); g = place_ops(G, ops, 2, 6)
            nd = opt('nd1', 0); ks = list(range(nd, 18)); h = len(ks) // 2
            ops = []
            for k in (ks[:h] if var == 'L13' else ks[h:]):
                so, imm = o_soff(k)
                ops.append(([so], I(f'buffer_store_dwordx4 {ar(stash(k))}, v{vL16}, {srd(sO)}, s{sT} offen offset:{imm}{STF()}')))
            post = [f's_add_u32 s{r}, s{r}, {144*4096}' for r in (sOe, sOo, sOX)] if var == 'L14' else []
            if ops: g = place_ops(G, ops, g + 2, (last - 12 - g) // len(ops), post)
            else:
                for x in post: g = G.place(seqd(x), g) + 1
    for ge, cv, ad in later:
        for r, x in enumerate(ad): G.place(x, ge[r] + 1, ge[r] + 13, force=F)
    if kind != 'D' and par == 0 and var != 'L14':
        g = lastk[1]
        for x in toggles(vKA, sKd): g = G.place(x, g, bar - 1)
        g = max(g, lastk[3])
        for x in toggles(vKB, sKd): g = G.place(x, g)
        G.place(f's_mul_i32 s{sKd}, s{sKd}, -1', g + 1)
    if kind != 'P' and par == 1 and var != 'D2':
        g = lastv[5] + 1
        for x in toggles((vVA[0], vVB[0]), sVd): g = G.place(x, g, tend[6] - 1)
        g = max(g, lastv[7] + 1)
        for x in toggles((vVA[1], vVB[1]), sVd): g = G.place(x, g)
        G.place(f's_mul_i32 s{sVd}, s{sVd}, -1', g + 1)
    g = last - 2 - len(extra)
    for x in extra: g = G.place(seqd(x), g) + 1
    if kind == 'D':
        tail = epilogue(G, tend, smg, var)
    return G.emit() + tail

def epilogue(G, tend, smg, var):
    n = len(G.m); pend = []
    nd = opt('nd1', 0) if var == 'D1' else 18
    moves = [(6, f'v_accvgpr_mov_b32 a{r}, a{80 + r}') for r in range(80)] if var == 'D1' else []
    if var == 'D1':
        pend += [(0, f'v_lshlrev_b32 v254, 3, v{vL16}')]
        if opt('two', 1): pend += [(0, x) for x in touch(12, 4096 * 1152, 0, 255, 254) + touch(12, 4096 * 1152, 512, 255, 254)[4:]]
        pend += [(0, x) for x in (f's_add_u32 s16, s24, {48 << 20}', 's_addc_u32 s17, s25, 0', 's_and_b32 s17, s17, 0xffff', 's_mov_b32 s18, 131072', 's_mov_b32 s19, 0x20000',
                                  f's_lshl_b32 s{sT}, s2, 2', f's_add_u32 s{sT}, s{sT}, s{sW}', f's_lshl_b32 s{sT}, s{sT}, 7', 'v_mov_b32 v254, 0',
                                  f'buffer_store_dword v254, v254, s[16:19], s{sT} offen')]
    pend += moves[:24]
    g = smg[3] + 8
    for i in range(4): pend += [(g, f'v_accvgpr_read_b32 v{vT + 2*i}, a{Lr(i)}'), (g, f'v_accvgpr_read_b32 v{vT + 2*i + 1}, a{Lr(i) + 1}')]
    for i in range(4): pend += [(g, f'v_add_f32 v{vT + 2*i}, v{vT + 2*i}, v{vT + 2*i + 1}')]
    for i in range(4): pend += [(g, f'v_rcp_f32 v{vRL + i}, v{vT + 2*i}')]
    pend += [(g, f'ds_write_b32 v{vLw}, v{vLX}')]
    pend += [(g, x) for x in (f'v_min3_u32 v{vT + 1}, v{vT}, v{vT + 2}, v{vT + 4}', f'v_max3_u32 v{vT + 3}, v{vT}, v{vT + 2}, v{vT + 4}',
                              f'v_min_u32 v{vT + 1}, v{vT + 1}, v{vT + 6}', f'v_max_u32 v{vT + 3}, v{vT + 3}, v{vT + 6}',
                              f'v_cmp_gt_u32 s[{sBad}:{sBad+1}], s{sLo}, v{vT + 1}', f'v_cmp_lt_u32 vcc, s{sHi}, v{vT + 3}',
                              f's_lshl_b32 s{sT}, s{sW}, 2', f's_add_u32 s{sT}, s{sT}, {EXF}',
                              f's_or_b64 s[{sBad}:{sBad+1}], s[{sBad}:{sBad+1}], vcc', f's_or_b32 s{sBad}, s{sBad}, s{sBad+1}',
                              f'v_mov_b32 v{vT + 1}, s{sT}', f'v_mov_b32 v{vT}, s{sBad}', f'ds_write_b32 v{vT + 1}, v{vT}')]
    if var == 'D1':
        for i in range(4): pend += [(g, f'v_accvgpr_write_b32 a{Lr(i)}, 0'), (g, f'v_accvgpr_write_b32 a{Lr(i) + 1}, 0')]
        pend += [(g, f'v_mov_b32 v{vLX}, 0')]
    pend += moves[24:]
    def out(k, b, rl, g):
        tmp = P(0, 0) + 4 * (k % 8)
        L = [f'v_mul_f32 v{b + r}, v{rl}, v{b + r}' for r in range(8)]
        so, imm = o_soff(k)
        if k < nd: L.append(so)
        L += [f'v_cvt_pk_bf16_f32 v{tmp + r}, v{b + 2*r}, v{b + 2*r + 1}' for r in range(4)]
        if k < nd: L.append(f'buffer_store_dwordx4 {vr(tmp)}, v{vL16}, {srd(sO)}, s{sT} offen offset:{imm}{STF()}')
        else: L += [f'v_accvgpr_write_b32 a{stash(k) + r}, v{tmp + r}' for r in range(4)]
        return [(g, x) for x in L]
    xw = lambda T: [f'ds_write_b128 v{vEXw}, {ar(OX(2*T + tt))} offset:{((T >> 1) * 2 + tt) * 1024}' for tt in range(2)]
    for T in range(3):
        g = tend[2 * T + 1] + 5
        for i in range(4): pend += out(4 * T + i, O(i, 2 * T), vRL + i, g)
    tail = place_stream(G, pend)
    R = P(1, 0)
    T3 = [I(x) for i in range(4) for _, x in out(12 + i, O(i, 6), vRL + i, 0)]
    rest = packed(tail + T3)
    c1 = min(6, len(rest)); c2 = min(c1 + 24, len(rest))
    rd = [I(f'ds_read_b128 {vr(R + 16 + 4*q)}, v{vLr} offset:{(q >> 1) * 512 + (q & 1) * 16}') for q in range(4)]
    rd += [I(f'ds_read_b128 {vr(R + 32)}, v{vT + 8}')] + [I(f'ds_read_b128 {vr(R + 4*q)}, v{vEXr} offset:{q * 1024}') for q in range(4)]
    tail = [I(x) for x in xw(1)] + rest[:c1] + [I(x) for x in xw(3)] + rest[c1:c2]
    tail += [I(f'v_mov_b32 v{vT + 8}, {EXF}'), I('s_waitcnt lgkmcnt(0)'), I('s_barrier')] + rd + rest[c2:]
    A = lambda t: tail.append(I(t))
    for pr in range(2):
        b = R + 16 + 8 * pr
        A(f'v_pk_add_f32 {vr(b, 2)}, {vr(b, 2)}, {vr(b + 2, 2)}'); A(f'v_pk_add_f32 {vr(b + 4, 2)}, {vr(b + 4, 2)}, {vr(b + 6, 2)}')
        A(f'v_pk_add_f32 {vr(b, 2)}, {vr(b, 2)}, {vr(b + 4, 2)}'); A(f'v_add_f32 v{b}, v{b}, v{b + 1}')
    A(f's_cmp_lt_u32 s{sW}, 2'); A('s_cselect_b64 vcc, -1, 0')
    A(f'v_cndmask_b32 v{vT}, v{R + 24}, v{R + 16}, vcc')
    A(f'v_rcp_f32 v{vRL + 4}, v{vT}')
    A(f'v_or3_b32 v{R + 32}, v{R + 32}, v{R + 33}, v{R + 34}'); A(f'v_or_b32 v{R + 32}, v{R + 32}, v{R + 35}')
    A(f'v_min_u32 v{R + 17}, v{R + 16}, v{R + 24}'); A(f'v_max_u32 v{R + 18}, v{R + 16}, v{R + 24}')
    A(f'v_cmp_ne_u32 s[{sBad}:{sBad+1}], 0, v{R + 32}')
    A(f'v_cmp_gt_u32 s[16:17], s{sLo}, v{R + 17}'); A(f'v_cmp_lt_u32 vcc, s{sHi}, v{R + 18}')
    for Th in range(2):
        b = R + 8 * Th
        for r in range(8): A(f'v_accvgpr_read_b32 v{vT + r}, a{OX(4 * Th) + r}')
        if Th == 0: A(f's_or_b64 s[{sBad}:{sBad+1}], s[{sBad}:{sBad+1}], vcc'); A(f's_or_b64 s[{sBad}:{sBad+1}], s[{sBad}:{sBad+1}], s[16:17]')
        for r in range(0, 8, 2): A(f'v_pk_add_f32 {vr(b + r, 2)}, {vr(b + r, 2)}, {vr(vT + r, 2)}')
        tail += packed([I(x) for _, x in out(16 + Th, b, vRL + 4, 0)])
    return tail

def linear(parts, sub, lab):
    seq = []
    for n, (k, s, var) in enumerate(parts):
        ex = [f's_sub_u32 s{sLoop}, s{sLoop}, 1', f's_cmp_lg_u32 s{sLoop}, 0'] if (k, s, var) == ('S', 2, '') else [f's_sub_u32 s{sLoop}, 7, s{sHead}'] if s == 0 else []
        code = stage(k, s, sub, var, ex)
        if (k, s, var) == ('S', 2, ''): code += [I(f's_cbranch_scc1 {lab}_loop'), I(f's_cmp_eq_u32 s{sHead}, 1'), I(f's_cbranch_scc1 {lab}_last')]
        seq += [I(f'@{n}:')] + code
    rep = []
    seq = finish(seq, rep)
    cut = {}; cur = None
    for x in seq:
        if x.text.startswith('@'): cur = int(x.text[1:-1]); cut[cur] = []
        else: cut[cur].append(x)
    return cut, rep

def head_code(sub, lab):
    a, rep = linear([('P', -1, ''), ('S', 0, ''), ('S', 1, ''), ('S', 2, ''), ('S', 1, ''), ('S', 2, ''), ('D', 15, 'D1')], sub, lab)
    b, rep2 = linear([('S', 2, ''), ('S', 1, ''), ('S', 2, ''), ('S', 13, 'L13'), ('S', 14, 'L14'), ('D', 15, 'D2')], sub, lab)
    assert text(a[2]) == text(a[4]) == text(b[1]), 'S odd differs between entries'
    assert text(a[3]) == text(a[5]) == text(b[2]), 'S even differs between entries'
    cyc = dict(P=est_cycles(a[0]), S0=est_cycles(a[1]), S1=est_cycles(a[2]), S2=est_cycles(a[3]), D1=est_cycles(a[6]), L13=est_cycles(b[3]), L14=est_cycles(b[4]), D2=est_cycles(b[5]))
    L = [I(f'{lab}_head:'), I('s_nop 1')] + a[0] + a[1] + [I(f'{lab}_loop:')] + a[2] + a[3] + stamp(4) + a[6] + stamp(5)
    L += [I(f's_mov_b32 s{sHead}, 1')] + stamp(6) + [I(f's_branch {lab}_head'), I(f'{lab}_last:')] + b[3] + b[4] + stamp(7) + b[5] + stamp(8)
    return L, cyc, rep + rep2

def build():
    s0, late = setup()
    q, qc = qproj(late)
    rep = []
    pre = finish(s0[:2] + stamp(0) + s0[2:] + q + qconv() + stamp(3), rep)
    hc, cyc, rep2 = head_code(False, 'L_h')
    L = pre + hc + stamp_dump(0, 24) + [I('L_attn_end:'), I('s_endpgm')]
    info = dict(qproj_cycles=qc, pre=est_cycles(pre), stage_cycles=cyc, nops=rep + rep2)
    return L, info
```

```python
from asmlib import *
MF = 'v_mfma_f32_16x16x32_bf16'
WOFF = 14336; PARS = 12320; SLOT = 38976
LDS_OPROJ = 4 * SLOT
WS_X = 40 << 20
WS_F = 48 << 20
def vr(b, n=4): return f'v[{b}:{b+n-1}]'
def ar(b, n=4): return f'a[{b}:{b+n-1}]'
sO, sWo, sOut, sXc = 28, 32, 36, 40
def srd(b): return f's[{b}:{b+3}]'
sW = 48; sKh = 49; sT = 51; sT2 = 52; sOo = 53; sQs = 54; sWoff = 55; sM = 56; sM0 = 57; sME = 58
sRd = 60; sLoop = 61; sHoff = 62; sQ = 64
sSig = 71; sStep = 72; sOb = 73; sWb = 74; sMe = 75; sPa = 76; sQ0 = 77
vL16 = 100; vDW = 101; vOB = 102; vWA = 103; vSt = 104; vSeq = 107; vZ = 105
def ACC(q, a): return 4 * (3 * q + a)
def BF(buf, q, ks): return 80 * buf + 8 * q + 4 * ks
def AF(buf, a, ks): return 80 * buf + 56 + 8 * a + 4 * ks
def OF(): return ' sc1' if opt('osc1', 0) else ''

def dma():
    ops = []
    for q in range(3):
        s = [f's_mov_b32 m0, s{sM}'] if q == 0 else []
        s.append(f's_add_u32 s{sT}, s{sOo}, s{sQ + q}')
        ops.append((s, [f'buffer_load_dwordx4 v{vL16}, {srd(sO)}, s{sT} offen offset:{q * 1024}{OF()} lds']))
    ops.append(([f's_add_u32 m0, s{sM}, s{sHoff}', f's_add_u32 s{sT}, s{sOo}, s{sQ + 3}'],
                ['s_mov_b32 exec_hi, 0', f'buffer_load_dwordx4 v{vL16}, {srd(sO)}, s{sT} offen{OF()} lds', 's_mov_b32 exec_hi, -1']))
    for k in range(6):
        u, c = k // 3, k % 3
        s = []
        if c == 0: s.append(f's_add_u32 m0, s{sM}, s{sWoff}' if u == 0 else 's_add_u32 m0, m0, 3072')
        s.append(f's_add_u32 s{sT}, s{sT2}, {u * 16 * 1152 + c * 128 - c * 1024 + 2048}')
        ops.append((s, [f'buffer_load_dwordx4 v{vDW}, {srd(sWo)}, s{sT} offen offset:{c * 1024} lds']))
    post = [f'v_readlane_b32 s{sSig}, v{vSeq}, s{sStep}', f's_add_u32 s{sStep}, s{sStep}, 1', f's_mul_i32 s{sOo}, s{sSig}, {144*4096}',
            f's_mul_i32 s{sSig}, s{sSig}, {128 * 1152}', f's_add_u32 s{sT2}, s{sSig}, s{sWb}',
            f's_add_u32 s{sM}, s{sM}, {SLOT}', f's_cmp_eq_u32 s{sM}, s{sME}', f's_cselect_b32 s{sM}, s{sM0}, s{sM}']
    return ops, post
def reads(buf):
    L = []
    for ks in range(2):
        for a in range(3):
            for u in range(2): L.append(f'ds_read_b64_tr_b16 {ar(AF(buf, a, ks) + 2*u, 2)}, v{vWA} offset:{buf * SLOT + ks * 6144 + a * 512 + u * 3072}')
    for q in range(7):
        for ks in range(2): L.append(f'ds_read_b128 {ar(BF(buf, q, ks))}, v{vOB} offset:{buf * SLOT + (ks * 7 + q) * 1024}')
    return L
def mfmas(buf, qs=range(7)):
    return [f'{MF} {vr(ACC(q, a))}, {ar(AF(buf, a, ks))}, {ar(BF(buf, q, ks))}, {vr(ACC(q, a))}' for q in qs for a in range(3) for ks in range(2)]

SEQ = [0]
def seqd(x):
    x = mk(x); SEQ[0] += 1; x.seq = SEQ[0]; return x
def stage(buf, extra=()):
    G = Gaps()
    for x in mfmas(buf ^ 1): G.add(x)
    G.sh[0].append(I('s_barrier'))
    G.sh[41].append(I('s_waitcnt vmcnt(20) lgkmcnt(0)'))
    ops, post = dma(); g = 1
    step = opt('ostep', 4); first = 3
    after = {0: post[0:2], 1: list(extra[:2]), 4: post[2:4], 5: post[5:6], 7: post[6:8], 8: list(extra[2:]), 9: post[4:5]}
    for n, (s, d) in enumerate(ops):
        g = max(g, first + n * step - len(s))
        for x in s: g = G.place(seqd(x), g) + 1
        if len(d) == 1: g = G.place(seqd(d[0]), g) + 1
        else:
            G.sh[g].append(seqd(d[0])); G.d[g] += [seqd(d[1]), seqd(d[2])]; g += 1
        for x in after.get(n, []): g = G.place(seqd(x), g) + 1
    g = 1
    for n, x in enumerate(reads(buf)): g = G.place(x, g) + 1
    if buf == 1:
        g = G.place(f'v_add_u32 v{vOB}, s{sRd}, v{vOB}', g); g = G.place(f'v_add_u32 v{vWA}, s{sRd}, v{vWA}', g)
    return G.emit()

def build():
    L = []; A = lambda t: L.append(I(t))
    A('s_and_b32 s26, s2, 1'); A('s_lshl_b32 s26, s26, 5'); A('s_lshr_b32 s3, s2, 3'); A('s_add_u32 s3, s3, s26')
    A('s_cmp_ge_u32 s2, 256'); A('s_cbranch_scc1 L_op_end')
    A('s_cmp_ge_u32 s3, 63'); A('s_cbranch_scc1 L_op_end')
    L += stamp(0)
    A('s_load_dwordx2 s[4:5], s[0:1], 32'); A('s_load_dwordx4 s[8:11], s[0:1], 72'); A('s_load_dwordx2 s[12:13], s[0:1], 96')
    A('v_lshrrev_b32 v1, 6, v0'); A('v_and_b32 v0, 63, v0'); A(f'v_readfirstlane_b32 s{sW}, v1')
    A('v_lshrrev_b32 v1, 4, v0'); A('v_bfe_u32 v2, v0, 2, 2'); A('v_and_b32 v3, 3, v0'); A(f'v_lshlrev_b32 v{vL16}, 4, v0')
    A('s_bfe_u32 s26, s2, 0x10002'); A(f's_bfe_u32 s{sKh}, s2, 0x10001')
    A('s_mul_i32 s27, s3, 43691'); A('s_lshr_b32 s27, s27, 17')
    A('s_mul_i32 s14, s27, 3'); A('s_sub_u32 s14, s3, s14')
    A(f's_lshr_b32 s18, s{sW}, 1'); A(f's_and_b32 s19, s{sW}, 1')
    A('v_and_b32 v4, 1, v1'); A('v_lshl_add_u32 v4, v4, 3, v2'); A('v_mul_u32_u24 v4, 1152, v4')
    A('v_lshrrev_b32 v5, 1, v1'); A('v_lshl_add_u32 v4, v5, 6, v4'); A(f'v_lshl_add_u32 v{vDW}, v3, 4, v4')
    E = opt('E', 2)
    A('s_add_u32 s17, s27, s14'); A('s_add_u32 s17, s17, 66')
    A('v_sub_u32 v5, s17, v0'); A('v_mul_u32_u24 v6, 43691, v5'); A('v_lshrrev_b32 v6, 17, v6'); A('v_mul_u32_u24 v6, 3, v6'); A('v_sub_u32 v5, v5, v6')
    A('v_add_u32 v5, v5, v0')
    A(f'v_subrev_u32 v6, {E}, v5'); A('v_max_i32 v6, 0, v6')
    A('v_subrev_u32 v7, 1, v0')
    A('v_cmp_eq_u32 vcc, v6, v0'); A('s_nop 1'); A('v_cndmask_b32 v7, v7, v5, vcc')
    A('v_cmp_gt_u32 vcc, v6, v0'); A('s_nop 1'); A('v_cndmask_b32 v7, v7, v0, vcc')
    A('v_cmp_lt_u32 vcc, 31, v5'); A('s_nop 1'); A(f'v_cndmask_b32 v{vSeq}, v7, v0, vcc')
    A(f's_cmp_eq_u32 s{sKh}, 0'); A(f's_cselect_b32 s{sQs}, 1, -1'); A(f's_cselect_b32 s{sQ0}, 0, 6')
    A('s_mul_i32 s16, s27, 7'); A(f's_add_u32 s{sQ0}, s{sQ0}, s16')
    A(f's_lshl_b32 s15, s{sKh}, 1'); A('s_add_u32 s15, s15, s19'); A('s_lshl_b32 s15, s15, 10')
    A('s_mul_i32 s16, s18, 3')
    for q in range(4):
        if q < 3: A(f's_add_u32 s{sT}, s16, {q}')
        else: A(f's_mov_b32 s{sT}, 6')
        A(f's_mul_i32 s{sT}, s{sT}, s{sQs}'); A(f's_add_u32 s{sT}, s{sT}, s{sQ0}'); A(f's_lshl_b32 s{sT}, s{sT}, 12'); A(f's_add_u32 s{sT}, s{sT}, s15')
        A(f's_add_u32 s{sQ + q}, s{sT}, {4096 - (q % 3) * 1024}')
    A(f's_lshl_b32 s{sT}, s18, 9'); A(f's_add_u32 s{sQ + 3}, s{sQ + 3}, s{sT}')
    A(f's_mul_i32 s{sM0}, s19, 7168'); A(f's_mul_i32 s{sT}, s18, 3072'); A(f's_add_u32 s{sM0}, s{sM0}, s{sT}')
    A(f's_mul_i32 s{sHoff}, s18, {(512 - 3072) & 0xffffffff}'); A(f's_add_u32 s{sHoff}, s{sHoff}, 6144')
    A(f's_mul_i32 s{sWoff}, s19, {PARS - 7168}'); A(f's_add_u32 s{sWoff}, s{sWoff}, s{sT}'); A(f's_add_u32 s{sWoff}, s{sWoff}, {WOFF}')
    A(f's_mov_b32 s{sM}, s{sM0}'); A(f's_add_u32 s{sME}, s{sM0}, {4 * SLOT}')
    A(f's_lshl_b32 s{sWb}, s{sKh}, 4'); A(f's_lshl_b32 s{sT}, s18, 3'); A(f's_add_u32 s{sWb}, s{sWb}, s{sT}'); A(f's_add_u32 s{sWb}, s{sWb}, s19')
    A(f's_mul_i32 s{sWb}, s{sWb}, {4 * 1152}'); A(f's_mul_i32 s{sT}, s14, 384'); A(f's_add_u32 s{sWb}, s{sWb}, s{sT}')
    A(f's_mov_b32 s{sStep}, 0')
    L.extend(I(x) for x in dma()[1][:5])
    A('s_waitcnt lgkmcnt(0)')
    A('s_cmp_eq_u32 s26, 0'); A('s_cselect_b64 s[4:5], s[4:5], s[8:9]')
    A(f's_sub_u32 s{sWo}, s4, 2048'); A(f's_subb_u32 s{sWo+1}, s5, 0'); A(f's_and_b32 s{sWo+1}, s{sWo+1}, 0xffff')
    A(f's_mov_b32 s{sWo+2}, {4096 * 1152 + 2048}'); A(f's_mov_b32 s{sWo+3}, 0x20000')
    A(f's_mul_i32 s{sT}, s26, {144 * 131072}'); A(f's_add_u32 s{sO}, s12, s{sT}'); A(f's_addc_u32 s{sO+1}, s13, 0')
    A(f's_sub_u32 s{sO}, s{sO}, 4096'); A(f's_subb_u32 s{sO+1}, s{sO+1}, 0'); A(f's_and_b32 s{sO+1}, s{sO+1}, 0xffff')
    A(f's_mov_b32 s{sO+2}, {144 * 131072 + 4096}'); A(f's_mov_b32 s{sO+3}, 0x20000')
    def flat():
        ops, post = dma()
        for s, d in ops: L.extend(I(x) for x in s + d)
        L.extend(I(x) for x in post)
    flat()
    A(f's_mov_b32 s{sOut}, s10'); A(f's_and_b32 s{sOut+1}, s11, 0xffff'); A(f's_mov_b32 s{sOut+2}, {2304 * 2304}'); A(f's_mov_b32 s{sOut+3}, 0x20000')
    A(f's_add_u32 s{sXc}, s12, {WS_X}'); A(f's_addc_u32 s{sXc+1}, s13, 0'); A(f's_and_b32 s{sXc+1}, s{sXc+1}, 0xffff')
    A(f's_mov_b32 s{sXc+2}, {WS_F - WS_X + 131072}'); A(f's_mov_b32 s{sXc+3}, 0x20000')
    A(f's_lshl_b32 s{sMe}, s2, 2'); A(f's_add_u32 s{sMe}, s{sMe}, s{sW}'); A(f's_xor_b32 s{sPa}, s{sMe}, 8')
    A(f'v_mov_b32 v{vOB}, v{vL16}')
    A(f's_mul_i32 s{sT}, s18, 1536'); A('s_lshl_b32 s16, s19, 5'); A(f's_add_u32 s{sT}, s{sT}, s16'); A(f's_add_u32 s{sT}, s{sT}, {WOFF}')
    A('v_and_b32 v4, 1, v1'); A(f'v_mul_u32_u24 v4, {PARS}, v4'); A('v_lshrrev_b32 v5, 1, v1'); A('v_lshl_add_u32 v4, v5, 8, v4')
    A('v_lshl_add_u32 v4, v2, 6, v4'); A('v_lshl_add_u32 v4, v3, 3, v4'); A(f'v_add_u32 v{vWA}, s{sT}, v4')
    A('v_and_b32 v4, 15, v0'); A('v_mul_u32_u24 v4, 2304, v4'); A('v_lshl_add_u32 v4, v1, 3, v4')
    A(f's_mul_i32 s{sT}, s26, 1152'); A('s_mul_i32 s17, s14, 384'); A(f's_add_u32 s{sT}, s{sT}, s17'); A(f's_add_u32 s{sT}, s{sT}, s16')
    A('s_mul_i32 s17, s18, 192'); A(f's_add_u32 s{sT}, s{sT}, s17')
    A(f'v_add_u32 v{vSt}, s{sT}, v4'); A(f'v_mov_b32 v{vZ}, 0')
    for r in range(84): A(f'v_mov_b32 v{r}, 0')
    flat()
    for r in range(80, 160): A(f'v_accvgpr_write_b32 a{r}, 0')
    flat()
    A(f's_mov_b32 s{sRd}, {-2 * SLOT & 0xffffffff}'); A(f's_mov_b32 s{sLoop}, 16')
    A('s_waitcnt vmcnt(20)')
    L += stamp(1)
    A('L_op_loop:')
    L += stage(0, [f's_sub_u32 s{sRd}, 0, s{sRd}', f's_sub_u32 s{sLoop}, s{sLoop}, 1'])
    L += stage(1)
    A(f's_cmp_lg_u32 s{sLoop}, 0'); A('s_cbranch_scc1 L_op_loop')
    L += stamp(2)
    G = Gaps()
    for x in mfmas(1, [6, 5, 4, 3, 0, 1, 2]): G.add(x)
    R = 128
    G.place(f's_mul_i32 s{sT}, s{sMe}, 6144', 0)
    g = 0
    for k in range(12):
        b = ACC(6 - k // 3, k % 3)
        g = G.place(f'v_cvt_pk_bf16_f32 v{R + 2*k}, v{b}, v{b + 1}', max(g, 2 * k + 6)); g = G.place(f'v_cvt_pk_bf16_f32 v{R + 2*k + 1}, v{b + 2}, v{b + 3}', g)
        if k & 1:
            n = k >> 1
            if n == 4: G.place(f's_add_u32 s{sT}, s{sT}, 4096', g + 1, force=True)
            g = G.place(f'buffer_store_dwordx4 {vr(R + 4*n)}, v{vL16}, {srd(sXc)}, s{sT} offen offset:{(n % 4) * 1024} sc1', g + 1)
    L += G.emit()
    A(f's_lshl_b32 s{sT}, s{sMe}, 7'); A(f's_add_u32 s{sT}, s{sT}, {WS_F - WS_X}'); A('v_mov_b32 v90, 1')
    A(f's_lshl_b32 s{sT2}, s{sPa}, 7'); A(f's_add_u32 s{sT2}, s{sT2}, {WS_F - WS_X}')
    A('s_waitcnt vmcnt(0)')
    A('s_mov_b64 exec, 1')
    A(f'buffer_store_dword v90, v{vZ}, {srd(sXc)}, s{sT} offen sc1')
    A(f's_mov_b32 s{sLoop}, {1 << 20}')
    A('L_op_poll:')
    A(f's_sub_u32 s{sLoop}, s{sLoop}, 1'); A(f's_cmp_eq_u32 s{sLoop}, 0'); A('s_cbranch_scc1 L_op_go')
    A(f'buffer_load_dword v91, v{vZ}, {srd(sXc)}, s{sT2} offen sc1')
    A('s_waitcnt vmcnt(0)')
    A(f'v_readfirstlane_b32 s{sT}, v91')
    A(f's_cmp_eq_u32 s{sT}, 1'); A('s_cbranch_scc0 L_op_poll')
    A('L_op_go:')
    A('s_mov_b64 exec, -1')
    A(f's_mul_i32 s{sT}, s{sPa}, 6144'); A(f's_add_u32 s{sT2}, s{sT}, 4096')
    R2 = 160
    for n in range(6): A(f'buffer_load_dwordx4 {vr(R2 + 4*n)}, v{vL16}, {srd(sXc)}, s{sT if n < 4 else sT2} offen offset:{(n % 4) * 1024} sc1')
    for q in range(4):
        A(f's_mul_i32 s{sT}, s{sQs}, {q}'); A(f's_add_u32 s{sT}, s{sT}, s{sQ0}'); A(f's_mul_i32 s{sT}, s{sT}, {16 * 2304}')
        if q == 3: A(f's_cmp_eq_u32 s18, s{sKh}'); A(f's_cselect_b32 s{sT}, s{sT}, {1 << 24}')
        for a in range(3):
            b = ACC(q, a); k = 3 * q + a; t = 192
            for h in range(2):
                A(f'v_lshlrev_b32 v{t + 2*h}, 16, v{R2 + 2*k + h}'); A(f'v_and_b32 v{t + 2*h + 1}, 0xffff0000, v{R2 + 2*k + h}')
            for h in range(2): A(f'v_pk_add_f32 {vr(b + 2*h, 2)}, {vr(b + 2*h, 2)}, {vr(t + 2*h, 2)}')
            A(f'v_cvt_pk_bf16_f32 v{b}, v{b}, v{b + 1}'); A(f'v_cvt_pk_bf16_f32 v{b + 1}, v{b + 2}, v{b + 3}')
            A(f'buffer_store_dwordx2 {vr(b, 2)}, v{vSt}, {srd(sOut)}, s{sT} offen offset:{a * 64}')
    L += stamp(3) + stamp_dump(1, 12)
    A('L_op_end:'); A('s_endpgm')
    rep = []
    return finish(L, rep), rep
```

```python
import sys, importlib
from asmlib import *
import attn, oproj
NAME = 'concat_heads__mha_block_cached__gqa_block_cached__near_ridge'
def kd(name, vg=512, acc=256):
    return f'''.amdhsa_kernel {name}
  .amdhsa_next_free_vgpr {vg}
  .amdhsa_next_free_sgpr 102
  .amdhsa_accum_offset {acc}
  .amdhsa_group_segment_fixed_size 0
  .amdhsa_kernarg_size 104
  .amdhsa_user_sgpr_count 2
  .amdhsa_user_sgpr_kernarg_segment_ptr 1
  .amdhsa_system_sgpr_workgroup_id_x 1
.end_amdhsa_kernel
'''
def head(name): return f'.globl {name}\n.p2align 8\n.type {name},@function\n{name}:\n'
def build(path):
    a, info = attn.build(); o, rep = oproj.build()
    print(info, rep)
    s = '; generated by gen/build.py\n'
    s += f'; @launch kernel=attn_kernel grid=(256,1,1) block=(256,1,1) lds={attn.LDS_ATTN}\n'
    s += f'; @launch kernel=oproj_kernel grid=(256,1,1) block=(256,1,1) lds={oproj.LDS_OPROJ}\n'
    s += '.amdgcn_target "amdgcn-amd-amdhsa--gfx950"\n.text\n'
    s += head('attn_kernel') + text(a) + head('oproj_kernel') + text(o)
    s += '.section .rodata,"a"\n.p2align 6\n' + kd('attn_kernel') + '.p2align 6\n' + kd('oproj_kernel')
    open(path, 'w').write(s)
if __name__ == '__main__':
    if 'stamp' in sys.argv: STAMP[0] = True
    for a in sys.argv[1:]:
        if '=' in a: k, v = a.split('='); OPT[k] = v
    build(sys.argv[1] if len(sys.argv) > 1 else f'cdna_kernels/{NAME}.s')
```
